```python
import torch

def _softmax(x, axis=-1):
    return torch.softmax(x, dim=axis)
def _gelu(x):
    return torch.nn.functional.gelu(x, approximate="tanh")
def _silu(x):
    return torch.nn.functional.silu(x)
def _sigmoid(x):
    return torch.sigmoid(x)
def _layernorm(x, axis=-1, eps=1e-5):
    m = x.mean(dim=axis, keepdim=True)
    v = x.var(dim=axis, keepdim=True, unbiased=False)
    return (x - m) / torch.sqrt(v + eps)
def _scatter_add(tgt, idx, src, axis=0):
    return tgt.clone().index_add_(axis, idx, src)
def _segment_sum(src, seg, n):
    out = torch.zeros((n,) + src.shape[1:], dtype=src.dtype)
    return out.index_add_(0, seg, src)
def _pad(x, pw):
    flat = tuple(v for pair in reversed(pw) for v in pair)
    return torch.nn.functional.pad(x, flat)

kernel_name = 'interleave_layers__ssm_conv_h3__glu_gated_bilinear__prompt'

def setup_inputs():

    _w = (lambda a: (lambda t: t.to(torch.bfloat16) if t.is_floating_point() else t)(torch.as_tensor(a)))
    def _A_setup():
        B, S, D = 1, 2048, 448
        ks = 4
        return {
            "q": _w((lambda *s: torch.randn(*s, dtype=torch.bfloat16) * 0.05)(B, S, D)),
            "k": _w((lambda *s: torch.randn(*s, dtype=torch.bfloat16) * 0.4)(B, S, D)),
            "v": _w((lambda *s: torch.randn(*s, dtype=torch.bfloat16) * 0.4)(B, S, D)),
            "shift_k": _w((lambda *s: torch.randn(*s, dtype=torch.bfloat16) * 0.4)(D, ks) * 0.5),
            "ssm_k": _w((lambda *s: torch.randn(*s, dtype=torch.bfloat16) * 0.4)(D, S) * (1.0 / S ** 0.5)),
            "ssm_D": _w((lambda *s: torch.randn(*s, dtype=torch.bfloat16) * 0.4)(D)),
        }
    _A_in = _A_setup()

    def _B_setup():
        B, S, D, F = 1, 2048, 448, 1792
        return {
            "x": _w((lambda *s: torch.randn(*s, dtype=torch.bfloat16) * 0.05)(B, S, D)),
            "w_gate": _w((lambda *s: torch.randn(*s, dtype=torch.bfloat16) * 0.8)(D, F) * (D ** -0.5)),
            "w_up": _w((lambda *s: torch.randn(*s, dtype=torch.bfloat16) * 0.8)(D, F) * (D ** -0.5)),
            "w_down": _w((lambda *s: torch.randn(*s, dtype=torch.bfloat16) * 0.8)(F, D) * (F ** -0.5)),
        }
    _B_in = _B_setup()

    return {
        "A_q": _A_in["q"],
        "A_k": _A_in["k"],
        "A_v": _A_in["v"],
        "A_shift_k": _A_in["shift_k"],
        "A_ssm_k": _A_in["ssm_k"],
        "A_ssm_D": _A_in["ssm_D"],
        "B_x": _B_in["x"],
        "B_w_gate": _B_in["w_gate"],
        "B_w_up": _B_in["w_up"],
        "B_w_down": _B_in["w_down"],
    }

def reference(A_q, A_k, A_v, A_shift_k, A_ssm_k, A_ssm_D, B_x, B_w_gate, B_w_up, B_w_down):
    def _A_ref(q, k, v, shift_k, ssm_k, ssm_D):
        B, S, D = q.shape
        ks = shift_k.shape[-1]
        k_pad = _pad(k, ((0, 0), (ks - 1, 0), (0, 0)))
        k_shift = torch.zeros_like(k)
        for t in range(ks):
            k_shift = k_shift + k_pad[:, t:t + S, :] * shift_k[:, ks - 1 - t][None, None, :]
        kv = k_shift * v
        L = 2 * S
        kv_pad = _pad(kv, ((0, 0), (0, S), (0, 0)))
        kf_pad = _pad(ssm_k, ((0, 0), (0, S)))
        kv_f = (lambda x, axes=(-2,-1): torch.fft.rfft2(x.float(), dim=axes))(kv_pad[:, None, :, :], axes=(1, 2))
        kf_f = (lambda x, axes=(-2,-1): torch.fft.rfft2(x.float(), dim=axes))(kf_pad[:, None, :], axes=(1, 2))
        kf_f = (lambda x, *d: x.permute(*d))(kf_f, 1, 2, 0)
        y_f = kv_f * kf_f[None, :, :, :]
        y = (lambda x, s, axes=(-2,-1): torch.fft.irfft2(x, s=s, dim=axes).to(torch.bfloat16))(y_f, (1, L), axes=(1, 2))[:, 0, :S, :]
        y = y + kv * ssm_D[None, None, :]
        return q * y

    def _B_ref(x, w_gate, w_up, w_down):
        g = torch.einsum("bsd,df->bsf", x, w_gate)
        u = torch.einsum("bsd,df->bsf", x, w_up)
        h = g * u
        return torch.einsum("bsf,fd->bsd", h, w_down)

    x = A_q
    x = x + _A_ref(_layernorm(x, axis=-1), A_k, A_v, A_shift_k, A_ssm_k, A_ssm_D)
    x = x + _B_ref(_layernorm(x, axis=-1), B_w_gate, B_w_up, B_w_down)
    x = x + _A_ref(_layernorm(x, axis=-1), A_k, A_v, A_shift_k, A_ssm_k, A_ssm_D)
    x = x + _B_ref(_layernorm(x, axis=-1), B_w_gate, B_w_up, B_w_down)
    return x
```

```python
import re

REG_RE = re.compile(r'^(-|abs\()?([vas])(\d+|\[(\d+):(\d+)\])\)?$')


def parse_reg(tok):
    tok = tok.strip()
    if tok in ('vcc', 'vcc_lo', 'vcc_hi'):
        return [('s', 'vcc')]
    if tok in ('exec', 'exec_lo', 'exec_hi'):
        return [('s', 'exec')]
    if tok == 'm0':
        return [('s', 'm0')]
    m = REG_RE.match(tok)
    if not m:
        return []
    k = m.group(2)
    if m.group(4) is not None:
        return [(k, i) for i in range(int(m.group(4)), int(m.group(5)) + 1)]
    return [(k, int(m.group(3)))]


def split_ops(s):
    out, depth, cur = [], 0, ''
    for ch in s:
        if ch in '[(':
            depth += 1
        if ch in '])':
            depth -= 1
        if ch == ',' and depth == 0:
            out.append(cur.strip()); cur = ''
        else:
            cur += ch
    if cur.strip():
        out.append(cur.strip())
    return out


TRANS = ('v_exp_', 'v_log_', 'v_rcp_', 'v_rsq_', 'v_sqrt_', 'v_sin_', 'v_cos_')


class Inst:
    def __init__(self, text):
        self.text = text
        t = text.split(';')[0].strip()
        self.label = t.endswith(':')
        self.directive = t.startswith('.')
        self.op = t.split()[0] if t else ''
        rest = t[len(self.op):].strip()
        ops = split_ops(rest)
        mods = ''
        if ops:
            parts = ops[-1].split(None, 1)
            ops[-1] = parts[0]
            mods = parts[1] if len(parts) > 1 else ''
        self.ops, self.mods = ops, mods
        self.w, self.r = set(), set()
        self.kind = 'other'
        self.srcC = set()
        self.storedata = set()
        op = self.op
        R = lambda i: set(parse_reg(ops[i])) if i < len(ops) else set()
        if self.label or self.directive or not op:
            self.kind = 'meta'
        elif op.startswith('v_mfma'):
            self.kind = 'mfma'
            self.passes = 8 if '32x32' in op else 4
            self.w = R(0); self.srcAB = R(1) | R(2); self.srcC = R(3); self.r = self.srcAB | self.srcC
        elif op.startswith('v_'):
            self.kind = 'valu'
            self.w = R(0)
            for i in range(1, len(ops)):
                self.r |= R(i)
            if op.startswith(('v_add_co', 'v_sub_co', 'v_addc_co', 'v_subb_co', 'v_subrev_co', 'v_mad_u64', 'v_div_scale')):
                self.w |= R(1); self.r -= R(1) if not op.startswith(('v_addc', 'v_subb')) else set()
            if op.startswith(('v_fmac', 'v_dot2c', 'v_pk_fmac', 'v_writelane')):
                self.r |= R(0)
            if op.startswith(('v_permlane16_swap', 'v_permlane32_swap', 'v_swap')):
                self.w |= R(1); self.r |= R(0)
            if op.startswith('v_cndmask') and len(ops) == 3:
                self.r.add(('s', 'vcc'))
            self.dpp = '_dpp' in op or 'row_' in mods or 'quad_perm' in mods or 'wave_' in mods
            if self.dpp:
                self.r |= R(0)
            self.trans = op.startswith(TRANS)
            self.sdwa_dst = ('dst_sel:WORD' in mods or 'dst_sel:BYTE' in mods)
        elif op.startswith('ds_'):
            self.kind = 'ds'
            if op.startswith(('ds_read', 'ds_bpermute', 'ds_permute', 'ds_swizzle')):
                self.w = R(0)
                for i in range(1, len(ops)):
                    self.r |= R(i)
            else:
                for i in range(len(ops)):
                    self.r |= R(i)
        elif op.startswith('buffer_') or op.startswith('global_'):
            self.kind = 'vmem'
            self.lds = bool(re.search(r'\blds\b', mods)) or '_lds_' in op
            if op in ('buffer_wbl2', 'buffer_inv'):
                pass
            elif self.lds:
                for i in range(len(ops)):
                    self.r |= R(i)
                self.r.add(('s', 'm0'))
            elif '_load' in op:
                self.w = R(0)
                for i in range(1, len(ops)):
                    self.r |= R(i)
            else:
                for i in range(len(ops)):
                    self.r |= R(i)
                if op.startswith('buffer_store') and ('x4' in op or 'x3' in op):
                    self.storedata = R(0)
                if op.startswith('global_store') and ('x4' in op or 'x3' in op):
                    self.storedata = R(1)
                if 'atomic' in op and 'sc0' in mods:
                    self.w = R(0)
        elif op.startswith(('s_load', 's_memtime', 's_memrealtime', 's_buffer_load')):
            self.kind = 'smem'
            self.w = R(0)
            for i in range(1, len(ops)):
                self.r |= R(i)
        elif op in ('s_waitcnt', 's_nop', 's_barrier', 's_endpgm', 's_sleep', 's_setprio') or op.startswith(('s_branch', 's_cbranch')):
            self.kind = 'ctl'
        elif op.startswith('s_'):
            self.kind = 'salu'
            if op.startswith(('s_cmp', 's_bitcmp')):
                for i in range(len(ops)):
                    self.r |= R(i)
            else:
                self.w = R(0)
                for i in range(1, len(ops)):
                    self.r |= R(i)
                if 'saveexec' in op:
                    self.w.add(('s', 'exec'))

    def states(self):
        if self.kind == 'meta':
            return 0
        if self.op == 's_nop':
            return int(self.ops[0], 0) + 1
        return 1


def need(p, c):
    n = 0
    vec = lambda s: {x for x in s if x[0] in 'va'}
    sca = lambda s: {x for x in s if x[0] == 's'}
    if p.kind == 'valu':
        pw = vec(p.w); ps = sca(p.w)
        if c.kind == 'mfma' and pw & c.r: n = max(n, 2)
        if c.kind == 'mfma' and ('s', 'exec') in ps: n = max(n, 4)
        if c.kind == 'vmem' and ps & c.r: n = max(n, 5)
        if c.kind == 'valu':
            if ps & c.r:
                n = max(n, 4 if c.op.startswith(('v_readlane', 'v_writelane', 'v_div_fmas')) else 2)
            if pw & c.r:
                if c.dpp or c.op.startswith('v_permlane'): n = max(n, 2)
                if c.op.startswith(('v_readlane', 'v_readfirstlane')): n = max(n, 1)
                if p.trans and not c.trans: n = max(n, 1)
                if p.trans and c.trans: n = max(n, 1)
                if p.sdwa_dst: n = max(n, 1)
                if p.op.startswith('v_dot2'):
                    same = p.op == c.op
                    srcc = set(parse_reg(c.ops[3])) if (same and len(c.ops) > 3) else (set(parse_reg(c.ops[0])) if same else set())
                    others = set()
                    for i in (1, 2):
                        others |= set(parse_reg(c.ops[i])) if len(c.ops) > i else set()
                    if not same or (pw & others): n = max(n, 3)
            if p.op.startswith('v_dot2') and pw & c.w and p.op != c.op: n = max(n, 3)
        if p.op.startswith('v_dot2') and c.kind in ('vmem', 'ds', 'mfma') and pw & (c.r | c.w): n = max(n, 3)
        if c.kind == 'salu' and ps & c.r: n = max(n, 1)
        if c.kind == 'ctl' and c.op.startswith('s_cbranch_vcc') and ('s', 'vcc') in ps: n = max(n, 0)
    if p.kind == 'mfma':
        big = {4: 8, 8: 12}[p.passes]; part = {4: 6, 8: 10}[p.passes]; war = {4: 3, 8: 7}[p.passes]
        if c.kind == 'mfma':
            if p.w & c.srcAB: n = max(n, big)
            if p.w & c.srcC and not (p.w == c.srcC and p.passes == c.passes): n = max(n, part)
            if p.w & c.w and not (p.w & c.srcC): n = max(n, big)
        elif c.kind == 'valu':
            if p.w & (c.r | c.w): n = max(n, big)
            if p.srcC & c.w: n = max(n, war)
        elif c.kind in ('vmem', 'ds'):
            if p.w & (c.r | c.w): n = max(n, big)
    if p.kind == 'salu':
        if ('s', 'm0') in p.w and c.kind == 'vmem' and c.lds: n = max(n, 1)
    if p.kind == 'vmem' and p.storedata:
        if c.kind == 'valu' and p.storedata & c.w: n = max(n, 2)
        elif c.kind in ('mfma', 'ds', 'vmem') and p.storedata & c.w: n = max(n, 1)
    return n


class Asm:
    def __init__(self):
        self.ins = []
        self.n = 0
        self.vm_issued = 0; self.vm_done = 0
        self.lg_issued = 0; self.lg_done = 0
        self.smem_pending = False

    def label(self, base):
        self.n += 1
        return f'L_{base}_{self.n}'

    def __call__(self, s):
        tok = None
        for x in s.split('\n'):
            x = x.strip()
            if not x:
                continue
            i = Inst(x)
            self.ins.append(i)
            if i.kind == 'vmem':
                self.vm_issued += 1; tok = ('vm', self.vm_issued)
            elif i.kind == 'ds':
                self.lg_issued += 1; tok = ('lg', self.lg_issued)
            elif i.kind == 'smem':
                self.smem_pending = True
            elif i.op == 's_waitcnt':
                m = re.search(r'vmcnt\((\d+)\)', x)
                if m: self.vm_done = max(self.vm_done, self.vm_issued - int(m.group(1)))
                m = re.search(r'lgkmcnt\((\d+)\)', x)
                if m:
                    if int(m.group(1)) == 0: self.smem_pending = False
                    if not self.smem_pending: self.lg_done = max(self.lg_done, self.lg_issued - int(m.group(1)))
        return tok

    def wait(self, *toks):
        vm = max([t[1] for t in toks if t and t[0] == 'vm'], default=0)
        lg = max([t[1] for t in toks if t and t[0] == 'lg'], default=0)
        parts = []
        if vm > self.vm_done:
            parts.append(f'vmcnt({min(63, self.vm_issued - vm)})')
        if lg > self.lg_done:
            parts.append(f'lgkmcnt({0 if self.smem_pending else min(15, self.lg_issued - lg)})')
        if parts:
            self('s_waitcnt ' + ' '.join(parts))

    def reset_counters(self):
        self.vm_done = self.vm_issued; self.lg_done = self.lg_issued; self.smem_pending = False

    def snapshot(self):
        return (self.vm_issued, self.vm_done, self.lg_issued, self.lg_done, self.smem_pending)

    def restore(self, s):
        self.vm_issued, self.vm_done, self.lg_issued, self.lg_done, self.smem_pending = s

    def finalize(self):
        out = []
        W = 24
        for c in self.ins:
            if c.kind != 'meta':
                dist = 0; req = 0
                for p in reversed(out[-W:]):
                    if p.kind != 'meta':
                        k = need(p, c)
                        if k > dist: req = max(req, k - dist)
                    dist += p.states()
                    if dist >= 20: break
                while req > 0:
                    k = min(req, 16)
                    out.append(Inst(f's_nop {k-1}')); req -= k
            out.append(c)
        self.check_pending(out)
        return '\n'.join(('' if i.label else '    ') + i.text for i in out) + '\n'

    def check_pending(self, ins):
        pend = {}
        vm = lg = 0
        smem = False
        for idx, c in enumerate(ins):
            if c.kind == 'meta':
                if c.text.startswith('.p2align 8') or 'RESET' in c.text:
                    pend.clear()
                continue
            if c.op in ('s_endpgm', 's_branch'):
                pend.clear(); continue
            if c.op == 's_waitcnt':
                m = re.search(r'vmcnt\((\d+)\)', c.text)
                if m:
                    lim = vm - int(m.group(1))
                    for k in [k for k, v in pend.items() if v[0] == 'vm' and v[1] <= lim]: del pend[k]
                m = re.search(r'lgkmcnt\((\d+)\)', c.text)
                if m:
                    n = int(m.group(1))
                    if n == 0:
                        smem = False
                        for k in [k for k, v in pend.items() if v[0] in ('lg', 'sm')]: del pend[k]
                    elif not smem:
                        lim = lg - n
                        for k in [k for k, v in pend.items() if v[0] == 'lg' and v[1] <= lim]: del pend[k]
                continue
            bad = (c.r | c.w) & set(pend)
            if bad and c.kind in ('vmem', 'ds') and not (c.r & set(pend)):
                cls = 'vm' if c.kind == 'vmem' else 'lg'
                if all(pend[b][0] == cls for b in bad): bad = set()
            if bad:
                raise RuntimeError(f'use of register with load in flight: {c.text}  regs {sorted(bad, key=str)[:4]} from {pend[next(iter(bad))]}')
            if c.kind == 'vmem':
                vm += 1
                for r in c.w: pend[r] = ('vm', vm, c.text)
            elif c.kind == 'ds':
                lg += 1
                for r in c.w: pend[r] = ('lg', lg, c.text)
            elif c.kind == 'smem':
                smem = True
                for r in c.w: pend[r] = ('sm', 0, c.text)


def kernel_begin(a, name):
    a(f'.text\n.globl {name}\n.p2align 8\n.type {name},@function\n{name}:')
    a.reset_counters()


def kernel_desc(name, vgpr, sgpr=96, accum=None):
    if accum is None: accum = min(256, (vgpr + 3) // 4 * 4)
    return f""".section .rodata,"a"
.p2align 6
.amdhsa_kernel {name}
  .amdhsa_next_free_vgpr {vgpr}
  .amdhsa_next_free_sgpr {sgpr}
  .amdhsa_accum_offset {accum}
  .amdhsa_group_segment_fixed_size 0
  .amdhsa_kernarg_size 104
  .amdhsa_user_sgpr_count 2
  .amdhsa_user_sgpr_kernarg_segment_ptr 1
  .amdhsa_system_sgpr_workgroup_id_x 1
  .amdhsa_float_denorm_mode_32 3
.end_amdhsa_kernel
"""


def srd(a, s, ptr, nbytes):
    a(f's_mov_b32 s{s}, s{ptr}\ns_and_b32 s{s+1}, s{ptr+1}, 0xffff\ns_mov_b32 s{s+2}, {nbytes}\ns_mov_b32 s{s+3}, 0x20000')
```

```python
import sys
from asmgen import *

NAME = 'interleave_layers__ssm_conv_h3__glu_gated_bilinear__prompt'
HDR = open('cdna_kernels/' + NAME + '.s.ref').read().split('; Override launch')[0]

FLAGS = 0
F_X1 = 0
F_P1 = 8192
F_X2 = 12288
F_P2 = 16384
UR = 0x100000
YT = 0x300000
WW = 0x500000
XNL = 0xA00000
XNG1 = 0xC00000
XNG2 = 0xE00000
PB1 = 0x1000000
PB2 = 0x2000000
STAMP = 0x2F00000
WS_BYTES = 0x3000000
OOB = 0x80000000
XBYTES = 2048 * 448 * 2
GROUPS = [(0, 1, 2), (3, 4), (5, 6)]


def g2pos(j, step):
    base = 0
    for g in GROUPS:
        if j in g:
            return base + step * len(g) + (j - g[0])
        base += 7 * len(g)


STN = {}


def ws_srd(a, opt):
    if opt.get('wsoff'):
        a(f's_add_u32 s4, s4, {opt["wsoff"] << 20}\ns_addc_u32 s5, s5, 0')
    srd(a, 8, 4, WS_BYTES)


def stamp(a, opt, name):
    if opt.get('stamps'):
        k, n = name.split(':')
        l = STN.setdefault(k, [])
        if n not in l: l.append(n)
        i = l.index(n)
        assert i < 21
        a(f'{"s_memtime" if opt["stamps"] == 2 else "s_memrealtime"} s[{60+2*i}:{61+2*i}]')


def dump_stamps(a, opt, k, slot):
    if not opt.get('stamps'):
        return
    a('s_waitcnt lgkmcnt(0) vmcnt(0)')
    a(f's_lshl_b32 s56, s2, 2\ns_add_u32 s56, s56, s22\ns_lshl_b32 s56, s56, 7\ns_add_u32 s56, s56, {STAMP + slot * 0x40000}')
    a('v_mov_b32 v1, 0\ns_mov_b64 exec, 1')
    for i in range(len(STN[k])):
        a(f'v_mov_b32 v2, s{60+2*i}\nbuffer_store_dword v2, v1, s[8:11], s56 offen offset:{4*i}')
    a('s_mov_b64 exec, -1')


def gen_kt(a, opt):
    kernel_begin(a, 'kt_kernel')
    a('s_cmp_ge_u32 s2, 400\ns_cbranch_scc1 L_kt_end')
    stamp(a, opt, 'kt:start')
    a('s_load_dwordx2 s[4:5], s[0:1], 96')
    a('s_load_dwordx4 s[24:27], s[0:1], 8')
    a('s_load_dwordx4 s[28:31], s[0:1], 24')
    a('s_load_dwordx4 s[32:35], s[0:1], 56')
    a('s_load_dwordx2 s[36:37], s[0:1], 72')
    a('v_lshrrev_b32 v2, 6, v0\nv_and_b32 v1, 63, v0\nv_readfirstlane_b32 s22, v2')
    a('s_waitcnt lgkmcnt(0)')
    ws_srd(a, opt)
    a('s_cmp_ge_u32 s2, 224\ns_cbranch_scc1 L_kt_w')
    srd(a, 12, 24, XBYTES); srd(a, 16, 26, XBYTES); srd(a, 40, 28, 448 * 8)
    a('s_lshr_b32 s20, s2, 5\ns_and_b32 s21, s2, 31')
    a('v_and_b32 v3, 31, v1\nv_lshrrev_b32 v4, 5, v0')
    a('s_lshl_b32 s23, s21, 6\nv_lshl_add_u32 v5, v4, 3, s23')
    a('s_lshl_b32 s23, s20, 7\nv_lshl_add_u32 v6, v3, 2, s23')
    a('v_mul_u32_u24 v7, 896, v5\nv_add_u32 v7, v7, v6')
    a(f'v_subrev_u32 v8, 2688, v7\nv_mov_b32 v9, {OOB}\nv_cmp_eq_u32 vcc, 0, v5\nv_cndmask_b32 v8, v8, v9, vcc')
    a('v_lshlrev_b32 v9, 2, v6')
    a('s_movk_i32 s23, 4480')
    tw = a('buffer_load_dwordx4 v[12:15], v9, s[40:43], 0 offen')
    K0, V0 = 16, 28
    tk = []
    for j in range(3):
        tk.append(a(f'buffer_load_dword v{K0+j}, v8, s[12:15], 0 offen offset:{896*j}'))
    for j in range(8):
        so, off = ('0', 896 * j) if j < 5 else ('s23', 896 * (j - 5))
        tk.append(a(f'buffer_load_dword v{K0+3+j}, v7, s[12:15], {so} offen offset:{off}'))
    tv = []
    for j in range(8):
        so, off = ('0', 896 * j) if j < 5 else ('s23', 896 * (j - 5))
        tv.append(a(f'buffer_load_dword v{V0+j}, v7, s[16:19], {so} offen offset:{off}'))
    WT, KF, VF, UF = 36, 44, 66, 68
    a.wait(tw)
    for tau in range(4):
        for c in range(2):
            src = 12 + 2 * c + (tau >> 1)
            a(f'v_lshlrev_b32 v{WT+2*tau+c}, 16, v{src}' if tau % 2 == 0 else f'v_and_b32 v{WT+2*tau+c}, 0xffff0000, v{src}')
    for j in range(11):
        a.wait(tk[j])
        a(f'v_lshlrev_b32 v{KF+2*j}, 16, v{K0+j}\nv_and_b32 v{KF+2*j+1}, 0xffff0000, v{K0+j}')
    for j in range(8):
        u = UF + 2 * j
        a(f'v_pk_mul_f32 v[{u}:{u+1}], v[{KF+2*(j+3)}:{KF+2*(j+3)+1}], v[{WT}:{WT+1}]')
        for tau in range(1, 4):
            a(f'v_pk_fma_f32 v[{u}:{u+1}], v[{KF+2*(j+3-tau)}:{KF+2*(j+3-tau)+1}], v[{WT+2*tau}:{WT+2*tau+1}], v[{u}:{u+1}]')
    for j in range(8):
        u = UF + 2 * j
        a.wait(tv[j])
        a(f'v_lshlrev_b32 v{VF}, 16, v{V0+j}\nv_and_b32 v{VF+1}, 0xffff0000, v{V0+j}')
        a(f'v_pk_mul_f32 v[{u}:{u+1}], v[{u}:{u+1}], v[{VF}:{VF+1}]')
    for c in range(2):
        for n in range(4):
            a(f'v_cvt_pk_bf16_f32 v{16+4*c+n}, v{UF+2*(7-2*n)+c}, v{UF+2*(6-2*n)+c}')
    a('v_mul_u32_u24 v10, 288, v3\nv_lshlrev_b32 v11, 4, v4\nv_sub_u32 v10, v10, v11\nv_add_u32 v10, 112, v10')
    a('ds_write_b128 v10, v[16:19]\nds_write_b128 v10, v[20:23] offset:144')
    a('v_lshrrev_b32 v10, 3, v0\nv_and_b32 v11, 7, v0\nv_lshlrev_b32 v11, 4, v11')
    a('v_mul_u32_u24 v12, 144, v10\nv_add_u32 v12, v12, v11')
    a('v_lshl_add_u32 v13, v10, 12, v11')
    a(f's_lshl_b32 s23, s20, 18\ns_lshl_b32 s24, s21, 7\ns_sub_u32 s23, s23, s24\ns_add_u32 s23, s23, {UR + 4096 - 128}')
    a('s_add_u32 s24, s23, 0x20000')
    a('s_waitcnt lgkmcnt(0)\ns_barrier')
    t0 = a('ds_read_b128 v[16:19], v12'); t1 = a(f'ds_read_b128 v[20:23], v12 offset:{32*144}')
    a.wait(t0); a('buffer_store_dwordx4 v[16:19], v13, s[8:11], s23 offen')
    a.wait(t1); a('buffer_store_dwordx4 v[20:23], v13, s[8:11], s24 offen')
    stamp(a, opt, 'kt:end')
    dump_stamps(a, opt, 'kt', 0)
    a('s_endpgm')
    a('L_kt_w:')
    a.reset_counters()
    a('s_cmp_ge_u32 s2, 336\ns_cbranch_scc1 L_kt_w2')
    srd(a, 12, 32, 448 * 3584); srd(a, 16, 34, 448 * 3584)
    a('s_sub_u32 s20, s2, 224\ns_and_b32 s21, s20, 7\ns_lshr_b32 s20, s20, 3')
    a('v_mul_u32_u24 v3, 2341, v0\nv_lshrrev_b32 v3, 16, v3\nv_mul_u32_u24 v4, 28, v3\nv_sub_u32 v4, v0, v4')
    a('v_mul_u32_u24 v5, 3584, v3\nv_lshl_add_u32 v5, v4, 4, v5')
    a(f'v_mov_b32 v6, {OOB}\nv_cmp_gt_u32 vcc, 224, v0\nv_cndmask_b32 v5, v6, v5, vcc')
    a(f's_mul_i32 s23, s20, {32*3584}\ns_mul_i32 s24, s21, 448\ns_add_u32 s23, s23, s24')
    tl = []
    for it in range(4):
        tl.append((a(f'buffer_load_dwordx4 v[{16+8*it}:{19+8*it}], v5, s[12:15], s23 offen'),
                   a(f'buffer_load_dwordx4 v[{20+8*it}:{23+8*it}], v5, s[16:19], s23 offen')))
        a(f's_add_u32 s23, s23, {8*3584}')
    PITCH = 928
    a(f'v_mul_u32_u24 v6, {PITCH}, v3\nv_lshl_add_u32 v6, v4, 5, v6')
    a('s_and_saveexec_b64 s[38:39], vcc')
    for it in range(4):
        g, u = 16 + 8 * it, 20 + 8 * it
        a.wait(*tl[it])
        a(f'ds_write2_b32 v6, v{g}, v{u} offset0:0 offset1:1\nds_write2_b32 v6, v{g+1}, v{u+1} offset0:2 offset1:3')
        a(f'ds_write2_b32 v6, v{g+2}, v{u+2} offset0:4 offset1:5\nds_write2_b32 v6, v{g+3}, v{u+3} offset0:6 offset1:7')
        if it < 3: a(f'v_add_u32 v6, {8*PITCH}, v6')
    a('s_mov_b64 exec, s[38:39]')
    a('v_lshrrev_b32 v7, 4, v1\nv_bfe_u32 v8, v1, 2, 2\nv_lshl_add_u32 v7, v7, 3, v8\nv_and_b32 v8, 3, v1')
    a(f'v_mul_u32_u24 v7, {PITCH}, v7\nv_lshl_add_u32 v7, v8, 3, v7\ns_mul_i32 s23, s22, 224\nv_add_u32 v7, s23, v7')
    a('v_lshlrev_b32 v9, 4, v1')
    a(f's_lshl_b32 s23, s21, 2\ns_add_u32 s23, s23, s22\ns_mul_i32 s23, s23, 150528\ns_mul_i32 s24, s20, 7168\ns_add_u32 s23, s23, s24\ns_add_u32 s23, s23, {WW}')
    a('s_add_u32 s24, s23, 4096')
    a('s_waitcnt lgkmcnt(0)\ns_barrier')
    tr = []
    for j in range(7):
        a(f'ds_read_b64_tr_b16 v[{16+4*j}:{17+4*j}], v7 offset:{32*j}')
        tr.append(a(f'ds_read_b64_tr_b16 v[{18+4*j}:{19+4*j}], v7 offset:{32*j + 4*PITCH}'))
    for j in range(7):
        a.wait(tr[j])
        a(f'buffer_store_dwordx4 v[{16+4*j}:{19+4*j}], v9, s[8:11], {"s23" if j < 4 else "s24"} offen offset:{1024*(j&3)}')
    stamp(a, opt, 'kt:end')
    dump_stamps(a, opt, 'kt', 0)
    a('s_endpgm')
    a('L_kt_w2:')
    a.reset_counters()
    a('s_cmp_ge_u32 s2, 392\ns_cbranch_scc1 L_kt_z')
    srd(a, 12, 36, 1792 * 896)
    a('s_sub_u32 s20, s2, 336\ns_and_b32 s21, s20, 7\ns_lshr_b32 s20, s20, 3')
    a('s_mul_i32 s23, s20, 7\ns_add_u32 s23, s23, s22')
    a('s_sub_u32 s24, s20, 4\ns_lshl_b32 s24, s24, 1\ns_lshr_b32 s25, s22, 1\ns_add_u32 s24, s24, s25\ns_mul_i32 s24, s24, 7')
    a('s_and_b32 s25, s22, 1\ns_add_u32 s24, s24, s25\ns_add_u32 s24, s24, 4')
    a('s_cmp_lt_u32 s20, 4\ns_cselect_b32 s23, s23, s24')
    a('s_mul_i32 s24, s22, 7\ns_add_u32 s24, s24, 6\ns_cmp_eq_u32 s20, 6\ns_cselect_b32 s23, s24, s23')
    a('s_mul_i32 s24, s21, 28\ns_add_u32 s23, s23, s24\ns_mul_i32 s23, s23, 7168')
    a('s_mul_i32 s24, s22, 7168\nv_lshlrev_b32 v9, 4, v1')
    for i in range(7):
        a('s_mov_b32 m0, s24\ns_add_u32 s24, s24, 1024')
        a('buffer_load_dwordx4 v9, s[12:15], s23 offen lds\ns_add_u32 s23, s23, 1024')
    a('v_lshrrev_b32 v7, 4, v1\nv_lshlrev_b32 v7, 1, v7\nv_bfe_u32 v8, v1, 2, 1\nv_add_u32 v7, v7, v8\nv_bfe_u32 v8, v1, 3, 1\nv_lshl_add_u32 v7, v8, 3, v7')
    a('v_mul_u32_u24 v7, 896, v7\nv_and_b32 v8, 3, v1\nv_lshl_add_u32 v7, v8, 4, v7')
    a('s_xor_b32 s25, s20, s22\ns_cmp_lt_u32 s20, 4\ns_cselect_b32 s25, s25, s20')
    a(f's_lshl_b32 s23, s21, 2\ns_add_u32 s23, s23, s22\ns_mul_i32 s23, s23, 150528\ns_add_u32 s23, s23, {WW + 98*1024}')
    a('s_mul_i32 s26, s22, 7')
    a('s_waitcnt vmcnt(0)\ns_barrier')
    tr = []
    for j in range(7):
        a(f's_add_u32 s27, s26, {j}\ns_lshr_b32 s28, s27, 1\ns_lshl_b32 s28, s28, 6\ns_and_b32 s27, s27, 1\ns_lshl_b32 s27, s27, 3\ns_add_u32 s27, s27, s28')
        a(f'v_add_u32 v8, s27, v7')
        a(f'ds_read_b64_tr_b16 v[{16+4*j}:{17+4*j}], v8')
        tr.append(a(f'ds_read_b64_tr_b16 v[{18+4*j}:{19+4*j}], v8 offset:14336'))
    for j in range(7):
        g = [g for g in GROUPS if j in g][0]
        a(f's_mul_i32 s27, s25, {1024*len(g)}\ns_add_u32 s27, s27, s23\ns_add_u32 s27, s27, {1024*g2pos(j, 0)}')
        a.wait(tr[j])
        a(f'buffer_store_dwordx4 v[{16+4*j}:{19+4*j}], v9, s[8:11], s27 offen')
    stamp(a, opt, 'kt:end')
    dump_stamps(a, opt, 'kt', 0)
    a('s_endpgm')
    a('L_kt_z:')
    a.reset_counters()
    a('s_sub_u32 s20, s2, 392\ns_lshl_b32 s20, s20, 12\nv_lshlrev_b32 v9, 4, v0')
    a('v_mov_b32 v4, 0\nv_mov_b32 v5, 0\nv_mov_b32 v6, 0\nv_mov_b32 v7, 0')
    a('buffer_store_dwordx4 v[4:7], v9, s[8:11], s20 offen')
    stamp(a, opt, 'kt:end')
    dump_stamps(a, opt, 'kt', 0)
    a('L_kt_end:\ns_endpgm')


DELTA = [12, 0, 1, 4, 5, 8, 9, 12]
KC_U = 0; KC_UP = 4608
KC_H = 9216; KC_HP = 35328
KC_Y = KC_H + 2 * KC_HP
KC_LDS = KC_Y + 8192


def gen_kc(a, opt):
    kernel_begin(a, 'kc_kernel')
    a('s_cmp_ge_u32 s2, 224\ns_cbranch_scc1 L_kc_end')
    stamp(a, opt, 'kc:start')
    a('s_load_dwordx2 s[4:5], s[0:1], 96')
    a('s_load_dwordx4 s[24:27], s[0:1], 32')
    a('v_lshrrev_b32 v2, 6, v0\nv_and_b32 v1, 63, v0\nv_readfirstlane_b32 s22, v2')
    a('s_waitcnt lgkmcnt(0)')
    a('s_lshl_b32 s3, s2, 2\ns_load_dword s30, s[26:27], s3')
    ws_srd(a, opt); srd(a, 12, 24, 448 * 4096)
    a('s_and_b32 s20, s22, 1\ns_lshr_b32 s21, s22, 1')
    a('s_lshl_b32 s23, s2, 1\ns_add_u32 s23, s23, s20\ns_lshl_b32 s23, s23, 12')
    a('v_lshlrev_b32 v9, 4, v1')
    a(f's_lshl_b32 s24, s21, 11\ns_add_u32 s25, s24, s23\ns_add_u32 s25, s25, {UR}\ns_mul_i32 s28, s20, {KC_UP}\ns_add_u32 s24, s24, s28')
    for i in range(2):
        a('s_mov_b32 m0, s24\ns_add_u32 s24, s24, 1024')
        a('buffer_load_dwordx4 v9, s[8:11], s25 offen lds\ns_add_u32 s25, s25, 1024')
    a(f's_mul_i32 s29, s20, {KC_HP}\ns_add_u32 s29, s29, {KC_H + 256}')
    for cc in range(4):
        a(f's_cmp_eq_u32 s21, 0\ns_mov_b32 s24, {cc*4352 + 16*DELTA[cc]}\ns_cselect_b32 s24, s24, {(cc+4)*4352 + 16*DELTA[cc+4]}\ns_add_u32 s24, s24, s29')
        a(f's_lshl_b32 s25, s21, 3\ns_add_u32 s25, s25, s23\ns_add_u32 s25, s25, {2*cc}')
        for i in range(4):
            a('s_mov_b32 m0, s24\ns_add_u32 s24, s24, 1024')
            a('buffer_load_dwordx4 v9, s[12:15], s25 offen lds\ns_add_u32 s25, s25, 1024')
    def copybase(dst, c):
        a(f's_mov_b32 s24, {sum(DELTA[i] << (4*i) for i in range(8))}\nv_lshlrev_b32 v10, 2, v{c}\nv_lshrrev_b32 v10, v10, s24\nv_and_b32 v10, 15, v10')
        a(f'v_mul_u32_u24 v{dst}, 4352, v{c}\nv_lshl_add_u32 v{dst}, v10, 4, v{dst}\nv_add_u32 v{dst}, s29, v{dst}')
    a('v_and_b32 v6, 7, v1'); copybase(3, 6)
    a('v_and_b32 v7, 15, v1\nv_add_u32 v8, 1, v7\nv_and_b32 v6, 7, v8'); copybase(4, 6)
    a('v_lshrrev_b32 v8, 3, v8\nv_lshrrev_b32 v11, 4, v1\nv_add_u32 v8, v8, v11\nv_lshl_add_u32 v4, v8, 4, v4\nv_subrev_u32 v4, 32, v4')
    a('v_lshlrev_b32 v5, 4, v11\nv_lshlrev_b32 v8, 5, v7\nv_sub_u32 v5, v5, v8\ns_add_u32 s24, s28, 480\nv_add_u32 v5, s24, v5')
    a('v_mov_b32 v12, 0\nv_mov_b32 v13, 0\nv_mov_b32 v14, 0\nv_mov_b32 v15, 0')
    a('v_subrev_u32 v8, 32, v3\nv_bfe_u32 v10, v1, 3, 1\nv_lshl_add_u32 v8, v10, 4, v8')
    a('s_add_u32 s24, s28, 4096\nv_add_u32 v10, s24, v9')
    a('s_cmp_eq_u32 s21, 0\ns_cselect_b64 vcc, -1, 0\ns_movk_i32 s24, 0x1ff\ns_cselect_b32 s24, s24, 0x3fffffff')
    a('v_cndmask_b32 v8, v10, v8, vcc')
    a('s_mov_b32 exec_lo, s24\ns_mov_b32 exec_hi, 0\nds_write_b128 v8, v[12:15]\ns_mov_b64 exec, -1')
    a('s_waitcnt vmcnt(0) lgkmcnt(0)\ns_barrier')
    stamp(a, opt, 'kc:ld')
    a('s_cmp_eq_u32 s20, 0\ns_cselect_b32 s24, 16, 0\ns_lshl_b32 s30, s30, s24\ns_and_b32 s30, s30, 0xffff0000')
    a('s_cmp_eq_u32 s21, 0\ns_cbranch_scc0 L_kc_h1')
    A0, B0, ACC = 32, 96, 16
    snap = a.snapshot()
    for half, qs in ((0, (7, 4, 3, 0)), (1, (6, 5, 2, 1))):
        if half == 1:
            a('L_kc_h1:'); a.restore(snap)
        qmax = qs[0]
        order = [1, 2, 3, 4, 5, 6, 7, 0]
        def loads(it):
            g0 = order[it]; buf = it & 1; toks = {}
            seq = []
            for i in range(qmax + 1):
                seq += [('A', i), ('B', qmax - i)]
            return [(k, i, (f'ds_read_b128 v[{A0+32*buf+4*i}:{A0+32*buf+4*i+3}], v4 offset:{512*i + 64*g0}' if k == 'A' else
                            f'ds_read_b128 v[{B0+32*buf+4*i}:{B0+32*buf+4*i+3}], v5 offset:{512*(7-i) + 64*g0}')) for k, i in seq]
        toks = {}
        for k, i, txt in loads(0):
            toks[(0, k, i)] = a(txt)
        if half == 0:
            a(f's_add_u32 s24, s29, {16*DELTA[0] - 16}\nv_lshl_add_u32 v8, v1, 1, s24\nv_subrev_u32 v10, 16, v3')
            a('s_mov_b64 exec, 0xfe')
            tf = a('ds_read_b128 v[12:15], v8')
            a('s_mov_b64 exec, -1')
        for it in range(8):
            buf = it & 1
            nxt = loads(it + 1) if it < 7 else []
            if it == 6:
                a('s_waitcnt lgkmcnt(0)\ns_barrier')
            pairs = [(q, g1) for g1 in range(qmax + 1) for q in qs if q >= g1]
            for n, (q, g1) in enumerate(pairs):
                m = q - g1
                a.wait(toks[(it, 'A', g1)], toks[(it, 'B', m)])
                acc = ACC + 4 * qs.index(q)
                c = '0' if (it == 0 and g1 == 0) else f'v[{acc}:{acc+3}]'
                a(f'v_mfma_f32_16x16x32_bf16 v[{acc}:{acc+3}], v[{A0+32*buf+4*g1}:{A0+32*buf+4*g1+3}], v[{B0+32*buf+4*m}:{B0+32*buf+4*m+3}], {c}')
                if nxt:
                    k, i, txt = nxt.pop(0)
                    toks[(it + 1, k, i)] = a(txt)
            assert not nxt
            if half == 0 and it == 0:
                a.wait(tf)
                a('s_mov_b64 exec, 0xfe\nds_write_b128 v10, v[12:15]\ns_mov_b64 exec, -1')
        stamp(a, opt, 'kc:mma')
        a('v_lshlrev_b32 v8, 5, v7\nv_lshl_add_u32 v8, v11, 3, v8')
        a(f's_add_u32 s24, s28, {4088 - 3584}\nv_sub_u32 v10, s24, v8')
        tu = [a(f'ds_read_b64 v[{32+2*i}:{33+2*i}], v10 offset:{512*(7-q)}') for i, q in enumerate(qs)]
        a(f's_lshl_b32 s24, s22, 11\ns_add_u32 s24, s24, {KC_Y}\nv_add_u32 v8, s24, v8\nv_add_u32 v10, s24, v9')
        for i, q in enumerate(qs):
            acc = ACC + 4 * i
            a.wait(tu[i])
            lo, hi = 32 + 2 * i, 33 + 2 * i
            a(f'v_and_b32 v40, 0xffff0000, v{hi}\nv_lshlrev_b32 v41, 16, v{hi}\nv_and_b32 v42, 0xffff0000, v{lo}\nv_lshlrev_b32 v43, 16, v{lo}')
            for r in range(4):
                a(f'v_fmac_f32 v{acc+r}, s30, v{40+r}')
            a(f'v_cvt_pk_bf16_f32 v{acc}, v{acc}, v{acc+1}\nv_cvt_pk_bf16_f32 v{acc+1}, v{acc+2}, v{acc+3}')
            a(f'ds_write_b64 v8, v[{acc}:{acc+1}] offset:{512*i}')
        a('s_waitcnt lgkmcnt(0)')
        t0 = a('ds_read_b128 v[32:35], v10'); t1 = a('ds_read_b128 v[36:39], v10 offset:1024')
        a(f'v_and_b32 v12, 31, v1\nv_lshlrev_b32 v12, 4, v12\nv_cmp_gt_u32 vcc, 32, v1\ns_add_u32 s24, s23, {YT}')
        for p in range(2):
            a(f'v_mov_b32 v13, {512*qs[2*p+1]}\nv_mov_b32 v14, {512*qs[2*p]}\nv_cndmask_b32 v13, v13, v14, vcc\nv_add_u32 v{44+p}, v13, v12')
        a.wait(t0); a('buffer_store_dwordx4 v[32:35], v44, s[8:11], s24 offen')
        a.wait(t1); a('buffer_store_dwordx4 v[36:39], v45, s[8:11], s24 offen')
        stamp(a, opt, 'kc:end')
        dump_stamps(a, opt, 'kc', 1)
        a('s_endpgm')
    a('L_kc_end:\ns_endpgm')


L_XN = 0; L_H = 57344; L_ST = 86016; K1_LDS = L_ST + 4 * 256
X = 16; YP = 32
vXR, vHB, vH1, vHa, vHb, vHc, vP, vPR, vXS, vQ, vW, vFW, vFR, vST, vSR = 1, 2, 3, 6, 7, 8, 9, 10, 11, 12, 13, 14, 15, 40, 41
ACC = 48; RING = 160; XF = 224; HOWN = 224 + 16
T0 = ACC


class Stream:
    def __init__(self, a):
        self.a = a; self.tok = {}; self.win = None; self.next_res = 0; self.next_str = 0

    @staticmethod
    def reg(layer, p):
        if p % 7 < 3:
            i = 3 * (p // 7) + p % 7
            return f'a[{4*i}:{4*i+3}]'
        n = 4 * (p // 7) + p % 7 - 3 + 84 * layer
        return f'v[{RING + 4*(n % 16)}:{RING + 4*(n % 16) + 3}]'

    def issue(self, layer, p):
        w = p >> 2
        if w != self.win:
            self.a(f's_mov_b32 s31, {WW + w*4096}'); self.win = w
        self.tok[(layer, p)] = self.a(f'buffer_load_dwordx4 {self.reg(layer, p)}, v{vW}, s[8:11], s31 offen offset:{(p & 3)*1024} {self.mod}')

    def issue_res(self, k=1):
        for _ in range(k):
            if self.next_res < 63:
                i = self.next_res; self.next_res += 1
                self.issue(0, 7 * (i // 3) + i % 3)

    def issue_str(self, limit):
        n = self.next_str
        if n < min(limit, 168):
            self.next_str += 1
            layer, r = divmod(n, 84)
            if self.nostream and layer == 1:
                self.tok[(layer, 7 * (r // 4) + 3 + r % 4)] = None
                return
            self.issue(layer, 7 * (r // 4) + 3 + r % 4)

    def wait(self, layer, p):
        self.a.wait(self.tok[(0 if p % 7 < 3 else layer, p)])

    def copy_state(self):
        return (dict(self.tok), self.win, self.next_res, self.next_str)

    def set_state(self, s):
        self.tok, self.win, self.next_res, self.next_str = dict(s[0]), s[1], s[2], s[3]


def poll(a, soff, first=False):
    L = a.label('poll')
    a(f's_mov_b32 s33, {soff}\ns_mov_b32 s34, 0')
    a(f'{L}:')
    a(f'buffer_load_dword v42, v{vFR}, s[8:11], s33 offen sc1')
    a(f's_add_u32 s34, s34, 1\ns_cmp_gt_u32 s34, 0x200000\ns_cbranch_scc1 {L}_x')
    a('s_waitcnt vmcnt(0)')
    a(f'v_cmp_ne_u32 vcc, s23, v42\ns_cbranch_vccnz {L}')
    a(f'{L}_x:\ns_waitcnt vmcnt(0)')


def put_flag(a, soff, mod, extra=0):
    a(f's_mov_b32 s33, {soff}\ns_mov_b64 exec, 1')
    a(f'buffer_store_dword v43, v{vFW}, s[8:11], s33 offen offset:{extra} {mod}')
    a('s_mov_b64 exec, -1')


def stats(a, rnd):
    t = T0 + 8
    for e in range(2):
        x = X + 8 * e; s = t + 4 * e
        a(f'v_pk_add_f32 v[{s}:{s+1}], v[{x}:{x+1}], v[{x+2}:{x+3}]')
        a(f'v_pk_mul_f32 v[{s+2}:{s+3}], v[{x}:{x+1}], v[{x}:{x+1}]')
        a(f'v_pk_add_f32 v[{s}:{s+1}], v[{s}:{s+1}], v[{x+4}:{x+5}]')
        a(f'v_pk_fma_f32 v[{s+2}:{s+3}], v[{x+2}:{x+3}], v[{x+2}:{x+3}], v[{s+2}:{s+3}]')
        a(f'v_pk_add_f32 v[{s}:{s+1}], v[{s}:{s+1}], v[{x+6}:{x+7}]')
        a(f'v_pk_fma_f32 v[{s+2}:{s+3}], v[{x+4}:{x+5}], v[{x+4}:{x+5}], v[{s+2}:{s+3}]')
        a(f'v_add_f32 v{s}, v{s}, v{s+1}')
        a(f'v_pk_fma_f32 v[{s+2}:{s+3}], v[{x+6}:{x+7}], v[{x+6}:{x+7}], v[{s+2}:{s+3}]')
    a(f'v_add_f32 v{t+2}, v{t+2}, v{t+3}\nv_add_f32 v{t+6}, v{t+6}, v{t+7}')
    S0, Q0, S1, Q1 = t, t + 2, t + 4, t + 6
    a(f'v_permlane32_swap_b32 v{S0}, v{S1}\nv_permlane32_swap_b32 v{Q0}, v{Q1}')
    a(f'v_add_f32 v{S0}, v{S0}, v{S1}\nv_add_f32 v{Q0}, v{Q0}, v{Q1}')
    a(f'v_permlane16_swap_b32 v{S0}, v{Q0}')
    a(f'v_add_f32 v{S0}, v{S0}, v{Q0}')
    a(f'v_add_f32_dpp v{S0}, v{S0}, v{S0} row_ror:4 row_mask:0xf bank_mask:0xf')
    a(f'v_add_f32_dpp v{S0}, v{S0}, v{S0} row_ror:8 row_mask:0xf bank_mask:0xf')
    a(f'ds_write_b32 v{vST}, v{S0} offset:{256*rnd}')
    a('s_waitcnt lgkmcnt(0)\ns_barrier')
    tk = [a(f'ds_read_b128 v[{t+4*i}:{t+4*i+3}], v{vSR} offset:{256*rnd + 16*i}') for i in range(4)]
    for e in range(2):
        s = t + 8 * e; q = s + 4
        a.wait(tk[2 * e + 1])
        a(f'v_pk_add_f32 v[{s}:{s+1}], v[{s}:{s+1}], v[{s+2}:{s+3}]\nv_pk_add_f32 v[{q}:{q+1}], v[{q}:{q+1}], v[{q+2}:{q+3}]')
        a(f'v_add_f32 v{s}, v{s}, v{s+1}\nv_add_f32 v{q}, v{q}, v{q+1}')
        a(f'v_mul_f32 v{s}, s36, v{s}\nv_fma_f32 v{q}, v{q}, s36, v44')
        a(f'v_fma_f32 v{q}, -v{s}, v{s}, v{q}\nv_max_f32 v{q}, v{q}, v44\nv_rsq_f32 v{T0+4*e}, v{q}')
        a(f'v_mul_f32 v{T0+4*e+2}, -v{s}, v{T0+4*e}'.replace('v_mul_f32 ', 'v_mul_f32_e64 '))


def e_phase(a, rnd, st_targets):
    YF = T0 + 32; Z = T0 + 24
    for i in range(8):
        a(f'v_lshlrev_b32 v{YF+i}, 16, v{YP+i}\nv_and_b32 v{YF+8+i}, 0xffff0000, v{YP+i}')
    stats(a, rnd)
    for e in range(2):
        for p in range(4):
            x = X + 8 * e + 2 * p; z = Z + 2 * p
            a(f'v_pk_fma_f32 v[{z}:{z+1}], v[{x}:{x+1}], v[{T0+4*e}:{T0+4*e+1}], v[{T0+4*e+2}:{T0+4*e+3}] op_sel_hi:[1,0,0]')
        for p in range(4):
            x = X + 8 * e + 2 * p; z = Z + 2 * p; y = YF + 8 * e + 2 * p
            a(f'v_pk_fma_f32 v[{x}:{x+1}], v[{z}:{z+1}], v[{y}:{y+1}], v[{x}:{x+1}]')
    stats(a, rnd + 1)
    O = T0 + 32
    for e in range(2):
        for p in range(4):
            x = X + 8 * e + 2 * p; z = Z + 2 * p
            a(f'v_pk_fma_f32 v[{z}:{z+1}], v[{x}:{x+1}], v[{T0+4*e}:{T0+4*e+1}], v[{T0+4*e+2}:{T0+4*e+3}] op_sel_hi:[1,0,0]')
        for p in range(4):
            a(f'v_cvt_pk_bf16_f32 v{O+4*e+p}, v{Z+2*p}, v{Z+2*p+1}')
        base, mod = st_targets[0]
        a(f's_mov_b32 s33, {base + 14336*e}\nbuffer_store_dwordx4 v[{O+4*e}:{O+4*e+3}], v{vXS}, s[8:11], s33 offen {mod}')
    return O


def gather_xn(a):
    a(f's_mul_i32 s33, s22, 14336\ns_add_u32 s34, s33, s35')
    tok = None
    for i in range(14):
        a('s_mov_b32 m0, s33\ns_add_u32 s33, s33, 1024')
        tok = a(f'buffer_load_dwordx4 v45, s[8:11], s34 offen sc1 lds\ns_add_u32 s34, s34, 1024')
    return tok


def touch_p(a, pbase):
    a(f's_mul_i32 s28, s20, 458752\ns_mul_i32 s29, s21, 57344\ns_add_u32 s28, s28, s29\ns_mul_i32 s29, s22, 14336\ns_add_u32 s28, s28, s29\ns_add_u32 s28, s28, {pbase}')
    a('v_lshlrev_b32 v46, 7, v0\nv_min_u32 v47, 47, v0\nv_lshlrev_b32 v47, 7, v47\ns_add_u32 s29, s28, 8192')
    a('buffer_load_dword v46, v46, s[8:11], s28 offen sc1\nbuffer_load_dword v47, v47, s[8:11], s29 offen sc1')


def ffn(a, S, layer, pbase, pmod, opt):
    acc1 = lambda j, mt: ACC + 4 * (mt * 7 + j)
    acc2 = lambda j, mt: ACC + 4 * (j * 4 + mt)
    xr = lambda buf, mt: XF + 16 * buf + 4 * mt
    lim = 84 * (layer + 1)
    xt = {}
    def xload(k, mt):
        xt[(k, mt)] = a(f'ds_read_b128 v[{xr(k & 1, mt)}:{xr(k & 1, mt)+3}], v{vXR} offset:{(mt*14 + k)*1024}')
    for mt in range(4): xload(0, mt)
    def conv_h(mt):
        ops = []
        for j in range(7):
            d = acc1(j, mt)
            dst = (HOWN + 4 * mt + j) if j < 4 else (acc1(4, mt) + (j - 4))
            ops.append(f'v_pk_mul_f32 v[{d}:{d+1}], v[{d}:{d+1}], v[{d+2}:{d+3}]')
            ops.append(f'v_cvt_pk_bf16_f32 v{dst}, v{d}, v{d+1}')
        h = HOWN + 4 * mt; o = acc1(4, mt)
        ops.insert(8, f'ds_write_b128 v{vHa}, v[{h}:{h+3}] offset:{7168*mt}')
        ops.append(f'ds_write_b64 v{vHb}, v[{o}:{o+1}] offset:{7168*mt}')
        ops.append(f'ds_write_b32 v{vHc}, v{o+2} offset:{7168*mt}')
        return ops
    for k in range(14):
        last = k == 13
        order = [(j, mt) for j in range(7) for mt in range(4)] if not last else [(j, mt) for mt in range(4) for j in range(7)]
        fill = []
        if layer == 0 and opt.get('touch', -1) == k:
            touch_p(a, pbase)
        for n, (j, mt) in enumerate(order):
            p = 7 * k + j
            S.wait(layer, p); a.wait(xt[(k, mt)])
            d = acc1(j, mt)
            c = '0' if k == 0 else f'v[{d}:{d+3}]'
            a(f'v_mfma_f32_16x16x32_bf16 v[{d}:{d+3}], {S.reg(layer, p)}, v[{xr(k & 1, mt)}:{xr(k & 1, mt)+3}], {c}')
            if not last:
                if 4 <= n < 8: xload(k + 1, n - 4)
                if mt == 3 and j >= 3: S.issue_str(lim)
                if mt == 1 and j < 3 and layer == 0: S.issue_res()
            else:
                if mt == 3 and j >= 3: S.issue_str(lim)
                if mt >= 1 and j == 2: fill += conv_h(mt - 1)
                for _ in range(3):
                    if fill: a(fill.pop(0))
        for f in fill: a(f)
    stamp(a, opt, f'k1:g1_{layer}')
    pend = conv_h(3)
    ht = {}
    hreg = lambda n, mt: XF + 16 * ((n + 1) & 1) + 4 * mt
    def hload(n, mt):
        st = n % 7
        addr, off = (vHa if st == 0 else vH1 + st - 1, 7168 * mt) if st < 4 else (vHB, 7168 * mt + 1024 * st)
        ht[(n, mt)] = a(f'ds_read_b128 v[{hreg(n, mt)}:{hreg(n, mt)+3}], v{addr} offset:{off}')
    a(f's_mov_b32 s38, {pbase}\ns_mov_b32 s39, {pbase + 4*57344}')
    for gi, g in enumerate(GROUPS):
        for step in range(7):
            ng = 7 * gi + step
            order = [(j, mt) for mt in range(4) for j in g] if ng == 0 else [(j, mt) for j in g for mt in range(4)]
            for n, (j, mt) in enumerate(order):
                pp = 98 + g2pos(j, step)
                S.wait(layer, pp)
                if ng > 0: a.wait(ht[(ng, mt)])
                d = acc2(j, mt)
                c = '0' if step == 0 else f'v[{d}:{d+3}]'
                a(f'v_mfma_f32_16x16x32_bf16 v[{d}:{d+3}], {S.reg(layer, pp)}, v[{hreg(ng, mt)}:{hreg(ng, mt)+3}], {c}')
                if ng == 0:
                    for _ in range(2):
                        if pend: a(pend.pop(0))
                    if n == 8:
                        assert not pend
                        a('s_waitcnt lgkmcnt(0)\ns_barrier')
                        hload(1, 0); hload(1, 1)
                    if n in (9, 10): hload(1, n - 7)
                elif ng < 20 and 2 <= n < 6: hload(ng + 1, n - 2)
                if mt == 3 and pp % 7 >= 3: S.issue_str(lim)
                if mt == 3 and pp % 7 < 3 and layer == 0: S.issue_res()
                if step >= 1:
                    for _ in range(2):
                        if pend: a(pend.pop(0))
        assert not pend
        for j in g:
            for aa in range(2):
                d = acc2(j, 2 * aa)
                for i in range(4):
                    pend.append(f'v_cvt_pk_bf16_f32 v{d+i}, v{d+2*i}, v{d+2*i+1}')
                pend.append(f'buffer_store_dwordx4 v[{d}:{d+3}], v{vP}, s[8:11], s{38+aa} offen offset:{256*j} {pmod}')
    stamp(a, opt, f'k1:g2_{layer}')
    for f in pend: a(f)


def reduce_p(a, S, layer, pbase):
    toks = []
    for s in range(8):
        a(f's_mov_b32 s33, {pbase + s*7168}')
        for e in range(2):
            r = T0 + 8 * s + 4 * e
            toks.append(a(f'buffer_load_dwordx4 v[{r}:{r+3}], v{vPR}, s[8:11], s33 offen offset:{256*e} sc1'))
    if layer == 0:
        for _ in range(16): S.issue_str(84 + 16)
    for s in range(8):
        for e in range(2):
            r = T0 + 8 * s + 4 * e
            a.wait(toks[2 * s + e])
            for i in range(4):
                x = X + 8 * (i >> 1) + 4 * e + 2 * (i & 1)
                a(f'v_dot2_f32_bf16 v{x}, v{r+i}, s40, v{x}\nv_dot2_f32_bf16 v{x+1}, v{r+i}, s41, v{x+1}')


def gen_k1(a, opt):
    kernel_begin(a, 'k1_kernel')
    a('s_cmp_ge_u32 s2, 256\ns_cbranch_scc1 L_k1_end')
    stamp(a, opt, 'k1:start')
    a('s_load_dwordx2 s[4:5], s[0:1], 96\ns_load_dwordx2 s[6:7], s[0:1], 0\ns_load_dwordx2 s[24:25], s[0:1], 80')
    a('s_getreg_b32 s23, hwreg(HW_REG_XCC_ID, 0, 4)\ns_add_u32 s23, s23, 1')
    a('v_lshrrev_b32 v2, 6, v0\nv_and_b32 v0, 63, v0\nv_readfirstlane_b32 s22, v2')
    a('s_and_b32 s20, s2, 7\ns_lshl_b32 s20, s20, 2\ns_lshr_b32 s21, s2, 6\ns_add_u32 s20, s20, s21')
    a('s_lshr_b32 s21, s2, 3\ns_and_b32 s21, s21, 7')
    a('v_lshrrev_b32 v48, 4, v0\nv_bfe_u32 v49, v0, 2, 2\nv_and_b32 v50, 3, v0')
    a('s_lshl_b32 s26, s22, 2\nv_add_u32 v51, s26, v48\nv_cmp_gt_u32 vcc, 14, v51')
    a(f'v_mov_b32 v52, {OOB}')
    a('s_lshl_b32 s26, s20, 6\ns_lshl_b32 s27, s21, 3\ns_add_u32 s26, s26, s27')
    a('v_lshl_add_u32 v53, v50, 1, s26\nv_mul_u32_u24 v54, 896, v53\nv_lshl_add_u32 v54, v51, 6, v54\nv_lshl_add_u32 v54, v49, 4, v54')
    a(f'v_cndmask_b32 v{vQ}, v52, v54, vcc')
    a('v_lshlrev_b32 v54, 17, v51\nv_lshl_add_u32 v54, v49, 15, v54\nv_lshl_add_u32 v54, v53, 1, v54\nv_cndmask_b32 v55, v52, v54, vcc')
    a('s_waitcnt lgkmcnt(0)')
    ws_srd(a, opt); srd(a, 12, 6, XBYTES); srd(a, 16, 24, XBYTES)
    tq = [a(f'buffer_load_dwordx4 v[{56+4*e}:{59+4*e}], v{vQ}, s[12:15], 0 offen offset:{896*e}') for e in range(2)]
    ty = []
    for i in range(8):
        a(f's_mov_b32 s33, {YT + 4096*i}')
        ty.append(a(f'buffer_load_dword v{YP+i}, v55, s[8:11], s33 offen'))
    a('s_mul_i32 s27, s20, 57344\ns_lshr_b32 s28, s21, 2\ns_mul_i32 s28, s28, 28672\ns_add_u32 s28, s28, s27\ns_and_b32 s29, s21, 3\ns_lshl_b32 s29, s29, 6\ns_add_u32 s28, s28, s29')
    a(f'v_lshlrev_b32 v54, 10, v51\nv_lshl_add_u32 v54, v49, 8, v54\nv_lshl_add_u32 v54, v50, 4, v54\nv_add_u32 v54, s28, v54\nv_cndmask_b32 v{vXS}, v52, v54, vcc')
    for e in range(2):
        a(f's_mov_b32 s33, {XNL + 14336*e}\nbuffer_load_dword v{46+e}, v{vXS}, s[8:11], s33 offen sc1')
    a(f's_lshl_b32 s28, s21, 2\ns_add_u32 s28, s28, s22\ns_mul_i32 s28, s28, 150528\nv_lshlrev_b32 v{vXR}, 4, v0\nv_add_u32 v{vW}, s28, v{vXR}')
    if opt.get('touch', -1) == 99: touch_p(a, PB1)
    S = Stream(a); S.nostream = opt.get('nostream', 0); S.mod = opt.get('wmod', '').replace('_', ' ')
    for k in range(4):
        S.issue_res(3)
        for _ in range(4): S.issue_str(16)
    a(f'v_add_u32 v45, s27, v{vXR}')
    a(f'v_add_u32 v{vHB}, {L_H}, v{vXR}')
    for st in range(1, 4):
        a(f's_xor_b32 s28, s22, {st}\ns_lshl_b32 s28, s28, 10\nv_add_u32 v{vH1+st-1}, s28, v{vHB}')
    a(f's_lshl_b32 s28, s22, 10\nv_add_u32 v{vHa}, s28, v{vHB}')
    a(f's_lshr_b32 s28, s22, 1\ns_lshl_b32 s28, s28, 10\ns_and_b32 s29, s22, 1\ns_lshl_b32 s29, s29, 3\ns_add_u32 s28, s28, s29\ns_add_u32 s28, s28, 4096\nv_add_u32 v{vHb}, s28, v{vHB}')
    a(f's_lshl_b32 s28, s22, 2\ns_add_u32 s28, s28, 6144\nv_add_u32 v{vHc}, s28, v{vHB}')
    a(f's_mul_i32 s28, s20, 458752\ns_mul_i32 s29, s21, 7168\ns_add_u32 s29, s29, s28\ns_mul_i32 s30, s22, 1792\ns_add_u32 s29, s29, s30')
    a(f'v_mul_u32_u24 v54, 57344, v49\nv_lshl_add_u32 v54, v48, 6, v54\nv_lshl_add_u32 v54, v50, 4, v54\nv_add_u32 v{vP}, s29, v54')
    a(f's_mul_i32 s29, s21, 57344\ns_add_u32 s29, s29, s28\nv_and_b32 v54, 15, v0\nv_lshlrev_b32 v54, 4, v54\nv_lshl_add_u32 v54, v51, 9, v54\nv_add_u32 v54, s29, v54\nv_cndmask_b32 v{vPR}, v52, v54, vcc')
    a(f's_lshl_b32 s28, s21, 4\ns_lshl_b32 s29, s22, 2\ns_add_u32 s28, s28, s29\ns_lshl_b32 s29, s20, 8\ns_add_u32 s28, s28, s29\nv_mov_b32 v{vFW}, s28')
    a(f'v_lshl_add_u32 v{vFR}, v0, 2, s29')
    a(f's_lshl_b32 s28, s22, 2\ns_add_u32 s28, s28, {L_ST}\nv_lshlrev_b32 v54, 6, v50\nv_lshl_add_u32 v{vST}, v48, 4, v54\nv_add_u32 v{vST}, s28, v{vST}\nv_add_u32 v{vSR}, {L_ST}, v54')
    import struct
    f2u = lambda f: struct.unpack('<I', struct.pack('<f', f))[0]
    a(f'v_mov_b32 v43, s23\nv_mov_b32 v44, {f2u(1e-5)}\ns_mov_b32 s36, {f2u(1/448.)}\ns_mov_b32 s40, 0x3f80\ns_mov_b32 s41, 0x3f800000')
    for e in range(2):
        a.wait(tq[e])
        for i in range(4):
            a(f'v_lshlrev_b32 v{X+8*e+2*i}, 16, v{56+4*e+i}\nv_and_b32 v{X+8*e+2*i+1}, 0xffff0000, v{56+4*e+i}')
    a.wait(ty[-1])
    stamp(a, opt, 'k1:qy')
    O = e_phase(a, 0, [(XNL, '')])
    a('s_waitcnt vmcnt(0)')
    stamp(a, opt, 'k1:E0')
    put_flag(a, F_X1, '')
    L = a.label('p1')
    a(f's_mov_b32 s34, 0\ns_mov_b32 s35, {XNL}\ns_mov_b32 s37, 0')
    a(f'{L}:')
    a(f's_mov_b32 s33, {F_X1}\nbuffer_load_dword v42, v{vFR}, s[8:11], s33 offen sc1')
    a('s_waitcnt vmcnt(0)')
    a(f'v_cmp_eq_u32 vcc, s23, v42\nv_cmp_ne_u32 s[28:29], 0, v42\ns_nop 1\ns_cmp_eq_u32 vcc_lo, -1\ns_cbranch_scc1 {L}_x')
    a(f's_add_u32 s34, s34, 1\ns_cmp_eq_u32 s34, 24\ns_cbranch_scc0 {L}_n')
    for e in range(2):
        a(f's_mov_b32 s33, {XNG1 + 14336*e}\nbuffer_store_dwordx4 v[{O+4*e}:{O+4*e+3}], v{vXS}, s[8:11], s33 offen sc1')
    a('s_waitcnt vmcnt(0)')
    put_flag(a, F_X1, 'sc1', 128)
    a(f'{L}_n:')
    a(f's_cmp_gt_u32 s34, 0x200000\ns_cbranch_scc1 {L}_x')
    a(f's_cmp_eq_u32 s29, -1\ns_cbranch_scc0 {L}')
    a(f's_mov_b32 s35, {XNG1}\ns_cmp_eq_u32 vcc_hi, -1\ns_cselect_b32 s37, 0, 1')
    a(f'{L}_x:')
    a.vm_done = a.vm_issued - 1
    stamp(a, opt, 'k1:pollx0')
    tg = gather_xn(a)
    S.issue_res(opt.get('resC', 24))
    a(f's_lshl_b32 s28, s20, 7\nv_subrev_u32 v{vFW}, s28, v{vFW}\nv_and_b32 v{vFR}, 31, v0\nv_lshl_add_u32 v{vFR}, v{vFR}, 2, s28')
    a.wait(tg)
    a('s_barrier')
    stamp(a, opt, 'k1:gath0')
    a('s_cmp_eq_u32 s37, 0\ns_cbranch_scc0 L_k1_global')
    snap = a.snapshot(); sst = S.copy_state()
    for mode in ('L', 'G'):
        if mode == 'G':
            a('L_k1_global:'); a.restore(snap); S.set_state(sst); S.win = None
        fm = '' if mode == 'L' else 'sc1'
        p1, m1 = PB1, (opt.get('p1mod', '') if mode == 'L' else 'sc1')
        p2, m2 = (PB1, '') if mode == 'L' else (PB2, 'sc1')
        xn2 = XNL if mode == 'L' else XNG2
        ffn(a, S, 0, p1, m1, opt)
        a('s_waitcnt vmcnt(0)')
        stamp(a, opt, 'k1:drain0')
        put_flag(a, F_P1, fm); poll(a, F_P1)
        stamp(a, opt, 'k1:pollp0')
        reduce_p(a, S, 0, p1)
        stamp(a, opt, 'k1:red0')
        e_phase(a, 2, [(xn2, fm)])
        a('s_waitcnt vmcnt(0)')
        stamp(a, opt, 'k1:E1')
        put_flag(a, F_X2, fm); poll(a, F_X2)
        stamp(a, opt, 'k1:pollx1')
        a(f's_mov_b32 s35, {xn2}')
        tg = gather_xn(a)
        a.wait(tg)
        a('s_barrier')
        stamp(a, opt, 'k1:gath1')
        ffn(a, S, 1, p2, m2, opt)
        a('s_waitcnt vmcnt(0)')
        stamp(a, opt, 'k1:drain1')
        put_flag(a, F_P2, fm); poll(a, F_P2)
        stamp(a, opt, 'k1:pollp1')
        reduce_p(a, S, 1, p2)
        stamp(a, opt, 'k1:red1')
        for e in range(2):
            for p in range(4):
                a(f'v_cvt_pk_bf16_f32 v{T0+4*e+p}, v{X+8*e+2*p}, v{X+8*e+2*p+1}')
            a(f'buffer_store_dwordx4 v[{T0+4*e}:{T0+4*e+3}], v{vQ}, s[16:19], 0 offen offset:{896*e}')
        stamp(a, opt, 'k1:end')
        dump_stamps(a, opt, 'k1', 2)
        a('s_endpgm')
    a('L_k1_end:\ns_endpgm')


def build(opt):
    a = Asm()
    gen_kt(a, opt); gen_kc(a, opt); gen_k1(a, opt)
    s = HDR
    for k, g, lds in (('kt_kernel', 400, 29696), ('kc_kernel', 224, KC_LDS), ('k1_kernel', 256, K1_LDS)):
        s += f'; @launch kernel={k} grid=({g},1,1) block=(256,1,1) lds={lds}\n'
    if opt.get('stamps'): s += '; STAMPS ' + '|'.join(k + ':' + ','.join(v) for k, v in STN.items()) + '\n'
    s += '.amdgcn_target "amdgcn-amd-amdhsa--gfx950"\n' + a.finalize()
    s += kernel_desc('kt_kernel', 88, 102) + kernel_desc('kc_kernel', 160, 102) + kernel_desc('k1_kernel', 512, 102, accum=256)
    return s


if __name__ == '__main__':
    opt = {}
    for x in sys.argv[2:]:
        k, v = x.split('=')
        opt[k] = int(v) if v.lstrip('-').isdigit() else v
    open(sys.argv[1], 'w').write(build(opt))
```

```python
import sys, struct
from asmgen import *

NAME = 'interleave_layers__ssm_conv_h3__glu_gated_bilinear__prompt'
HDR = open('cdna_kernels/' + NAME + '.s.ref').read().split('; Override launch')[0]

EPOCH = 0
FU_L = 0x1000
FU_G = 0x2000
F_W = 0x3000
F_X0 = 0x5000
F_P = 0x7000
F_X1 = 0x9000
UR = 0x40000
XNL = 0x200000
YT = 0x3C0000
WW = 0x740000
URG = 0xBE0000
XNG1 = 0xDA0000
XNG2 = 0xF60000
PB1 = 0x1200000
PB2 = 0x2080000
STAMP = 0x2F00000
WS_BYTES = 0x3000000
OOB = 0x80000000
XBYTES = 2048 * 448 * 2
GROUPS = [(0, 1, 2), (3, 4), (5, 6)]
SPIN = 0x100000
f2u = lambda f: struct.unpack('<I', struct.pack('<f', f))[0]


def g2pos(j, step):
    base = 0
    for g in GROUPS:
        if j in g:
            return base + step * len(g) + (j - g[0])
        base += 7 * len(g)


STN = []
SSET = {'front': 'start kv ust uflag upoll cstart mma yst wpoll y E0 px0 gath0 end'.split(),
        'early': 'start ka kvi early kv kv2 ust uflag upoll hcp cstart mma yst wpoll y E0 px0 gath0 end'.split(),
        'back': 'start gath0 g1_0 g2_0 drain0 pp0 red0 E1 px1 gath1 g1_1 g2_1 drain1 pp1 end'.split()}


def stamp(a, opt, n):
    if opt.get('stamps') and n in SSET[opt.get('sset', 'front')]:
        if n not in STN: STN.append(n)
        i = STN.index(n)
        assert i < 21
        a(f'{"s_memtime" if opt["stamps"] == 2 else "s_memrealtime"} s[{60+2*i}:{61+2*i}]')


def dump_stamps(a, opt):
    if not opt.get('stamps'):
        return
    a('s_waitcnt lgkmcnt(0) vmcnt(0)')
    a(f's_lshl_b32 s26, s2, 2\ns_add_u32 s26, s26, s22\ns_lshl_b32 s26, s26, 7\ns_add_u32 s26, s26, {STAMP}')
    a('v_mov_b32 v1, 0\ns_mov_b64 exec, 1')
    for i in range(len(STN)):
        a(f'v_mov_b32 v2, s{60+2*i}\nbuffer_store_dword v2, v1, s[8:11], s26 offen offset:{4*i}')
    a('s_mov_b64 exec, -1')


L_XN = 0; L_H = 57344; L_ST = 125952
DELTA = [12, 0, 1, 4, 5, 8, 9, 12]
KC_UP = 4608; KC_H = 9216; KC_HP = 35328
KC_Y = KC_H + 2 * KC_HP
L_UB = 96256
L_WS = 105472
L_LOC = 125440
LDS_BYTES = L_ST + 1024
W1P = 928

X = 16; YP = 32
vXR, vHB, vH1, vHa, vHb, vHc, vP, vPR, vXS, vQ, vW, vFW, vFR, vST, vSR = 1, 2, 3, 6, 7, 8, 9, 10, 11, 12, 13, 14, 15, 40, 41
vPL, vTAG, vEPS, vXG, vD0, vD1 = 42, 43, 44, 45, 46, 47
ACC = 48; RING = 160; NR = 14; XF = 224; HOWN = XF + 16
vY = 216; vTP = 217; vTQ = 218
T0 = ACC


def resident_set():
    res = [7 * k + j for k in range(14) for j in range(2)] + [98 + i for i in range(14, 49)]
    assert len(res) == 63
    return res


RES = resident_set()
STR = [p for p in range(147) if p not in RES]


class Stream:
    def __init__(self, a):
        self.a = a; self.tok = {}; self.win = None

    @staticmethod
    def reg(p):
        if p in RES:
            i = RES.index(p)
            return f'a[{4*i}:{4*i+3}]'
        n = STR.index(p) % NR
        return f'v[{RING + 4*n}:{RING + 4*n + 3}]'

    def issue(self, layer, p):
        w = p >> 2
        if w != self.win:
            self.a(f's_mov_b32 s31, {WW + w*4096}'); self.win = w
        self.tok[(layer, p)] = self.a(f'buffer_load_dwordx4 {self.reg(p)}, v{vW}, s[8:11], s31 offen offset:{(p & 3)*1024}')

    def prefetch(self, k):
        todo = sorted(p for p in set(STR[:NR] + RES) if (0, p) not in self.tok)
        for p in todo[:k]: self.issue(0, p)

    def refill(self, layer, p):
        n = STR.index(p) + NR
        if n < len(STR): self.issue(layer, STR[n])

    def wait(self, layer, p):
        self.a.wait(self.tok[(0 if p in RES else layer, p)])

    def state(self): return (dict(self.tok), None)

    def set_state(self, st): self.tok, self.win = dict(st[0]), None


def flag_store(a, vaddr, soff, mod, srd_='s[8:11]', off=0):
    a(f's_mov_b64 exec, 1\nbuffer_store_dword v{vTAG}, v{vaddr}, {srd_}, {soff} offen offset:{off} {mod}\ns_mov_b64 exec, -1')


def poll_masked(a, vaddr, soff, name):
    L = a.label(name)
    a('s_mov_b32 s34, 0')
    a(f'{L}:')
    a(f'buffer_load_dword v{vPL}, v{vaddr}, s[8:11], {soff} offen sc1')
    a(f's_add_u32 s34, s34, 1\ns_cmp_gt_u32 s34, {SPIN}\ns_cbranch_scc1 {L}_x')
    a(f's_waitcnt vmcnt(0)\nv_and_b32 v{vPL}, -16, v{vPL}')
    a(f'v_cmp_ne_u32 vcc, s42, v{vPL}\ns_cbranch_vccnz {L}')
    a(f'{L}_x:\ns_waitcnt vmcnt(0)')


def stats(a, rnd):
    t = T0 + 8
    for e in range(2):
        x = X + 8 * e; s = t + 4 * e
        a(f'v_pk_add_f32 v[{s}:{s+1}], v[{x}:{x+1}], v[{x+2}:{x+3}]')
        a(f'v_pk_mul_f32 v[{s+2}:{s+3}], v[{x}:{x+1}], v[{x}:{x+1}]')
        a(f'v_pk_add_f32 v[{s}:{s+1}], v[{s}:{s+1}], v[{x+4}:{x+5}]')
        a(f'v_pk_fma_f32 v[{s+2}:{s+3}], v[{x+2}:{x+3}], v[{x+2}:{x+3}], v[{s+2}:{s+3}]')
        a(f'v_pk_add_f32 v[{s}:{s+1}], v[{s}:{s+1}], v[{x+6}:{x+7}]')
        a(f'v_pk_fma_f32 v[{s+2}:{s+3}], v[{x+4}:{x+5}], v[{x+4}:{x+5}], v[{s+2}:{s+3}]')
        a(f'v_add_f32 v{s}, v{s}, v{s+1}')
        a(f'v_pk_fma_f32 v[{s+2}:{s+3}], v[{x+6}:{x+7}], v[{x+6}:{x+7}], v[{s+2}:{s+3}]')
    a(f'v_add_f32 v{t+2}, v{t+2}, v{t+3}\nv_add_f32 v{t+6}, v{t+6}, v{t+7}')
    S0, Q0, S1, Q1 = t, t + 2, t + 4, t + 6
    a(f'v_permlane32_swap_b32 v{S0}, v{S1}\nv_permlane32_swap_b32 v{Q0}, v{Q1}')
    a(f'v_add_f32 v{S0}, v{S0}, v{S1}\nv_add_f32 v{Q0}, v{Q0}, v{Q1}')
    a(f'v_permlane16_swap_b32 v{S0}, v{Q0}')
    a(f'v_add_f32 v{S0}, v{S0}, v{Q0}')
    a(f'v_add_f32_dpp v{S0}, v{S0}, v{S0} row_ror:4 row_mask:0xf bank_mask:0xf')
    a(f'v_add_f32_dpp v{S0}, v{S0}, v{S0} row_ror:8 row_mask:0xf bank_mask:0xf')
    a(f'ds_write_b32 v{vST}, v{S0} offset:{256*rnd}')
    a('s_waitcnt lgkmcnt(0)\ns_barrier')
    tk = [a(f'ds_read_b128 v[{t+4*i}:{t+4*i+3}], v{vSR} offset:{256*rnd + 16*i}') for i in range(4)]
    for e in range(2):
        s = t + 8 * e; q = s + 4
        a.wait(tk[2 * e + 1])
        a(f'v_pk_add_f32 v[{s}:{s+1}], v[{s}:{s+1}], v[{s+2}:{s+3}]\nv_pk_add_f32 v[{q}:{q+1}], v[{q}:{q+1}], v[{q+2}:{q+3}]')
        a(f'v_add_f32 v{s}, v{s}, v{s+1}\nv_add_f32 v{q}, v{q}, v{q+1}')
        a(f'v_mul_f32 v{s}, s36, v{s}\nv_fma_f32 v{q}, v{q}, s36, v{vEPS}')
        a(f'v_fma_f32 v{q}, -v{s}, v{s}, v{q}\nv_max_f32 v{q}, v{q}, v{vEPS}\nv_rsq_f32 v{T0+4*e}, v{q}')
        a(f'v_mul_f32_e64 v{T0+4*e+2}, -v{s}, v{T0+4*e}')


YF = T0 + 64; Z = T0 + 80; XO = T0 + 96


def norm_to(a, dst):
    for e in range(2):
        for p in range(4):
            x = X + 8 * e + 2 * p; z = dst + 8 * e + 2 * p
            a(f'v_pk_fma_f32 v[{z}:{z+1}], v[{x}:{x+1}], v[{T0+4*e}:{T0+4*e+1}], v[{T0+4*e+2}:{T0+4*e+3}] op_sel_hi:[1,0,0]')


def unpack_y(a):
    for i in range(8):
        a(f'v_lshlrev_b32 v{YF+i}, 16, v{YP+i}\nv_and_b32 v{YF+8+i}, 0xffff0000, v{YP+i}')


def gate_and_norm(a, rnd, store):
    for p in range(8):
        x = X + 2 * p
        a(f'v_pk_fma_f32 v[{x}:{x+1}], v[{Z+2*p}:{Z+2*p+1}], v[{YF+2*p}:{YF+2*p+1}], v[{x}:{x+1}]')
    stats(a, rnd)
    norm_to(a, Z)
    for e in range(2):
        for p in range(4):
            a(f'v_cvt_pk_bf16_f32 v{XO+4*e+p}, v{Z+8*e+2*p}, v{Z+8*e+2*p+1}')
        store(e)


def gather_xn(a):
    a(f's_mul_i32 s33, s22, 14336\ns_add_u32 s34, s33, s35')
    toks = []
    for i in range(14):
        a('s_mov_b32 m0, s33\ns_add_u32 s33, s33, 1024')
        toks.append(a(f'buffer_load_dwordx4 v{vXG}, s[8:11], s34 offen sc1 lds\ns_add_u32 s34, s34, 1024'))
    return toks


def ffn(a, S, opt, layer, tg, pbase, pmod, touch):
    acc1 = lambda j, mt: ACC + 4 * (mt * 7 + j)
    acc2 = lambda j, mt: ACC + 4 * (j * 4 + mt)
    xr = lambda buf, mt: XF + 16 * buf + 4 * mt
    wwait = lambda p: S.wait(layer, p)
    a(f's_mov_b32 s38, {pbase}\ns_mov_b32 s39, {pbase + 4*57344}')
    xt = {}
    def xload(k, mt):
        xt[(k, mt)] = a(f'ds_read_b128 v[{xr(k & 1, mt)}:{xr(k & 1, mt)+3}], v{vXR} offset:{(mt*14 + k)*1024}')
    for mt in range(4): xload(0, mt)
    def conv_h(mt):
        ops = []
        for j in range(7):
            d = acc1(j, mt)
            dst = (HOWN + 4 * mt + j) if j < 4 else (acc1(4, mt) + (j - 4))
            ops.append(f'v_pk_mul_f32 v[{d}:{d+1}], v[{d}:{d+1}], v[{d+2}:{d+3}]')
            ops.append(f'v_cvt_pk_bf16_f32 v{dst}, v{d}, v{d+1}')
        h = HOWN + 4 * mt; o = acc1(4, mt)
        ops.insert(8, f'ds_write_b128 v{vHa}, v[{h}:{h+3}] offset:{7168*mt}')
        ops.append(f'ds_write_b64 v{vHb}, v[{o}:{o+1}] offset:{7168*mt}')
        ops.append(f'ds_write_b32 v{vHc}, v{o+2} offset:{7168*mt}')
        return ops
    G0 = opt.get('g0', 4)
    for k in range(14):
        last = k == 13
        order = [(j, mt) for j in range(7) for mt in range(4)] if not last else [(j, mt) for mt in range(4) for j in range(7)]
        fill = []
        for n, (j, mt) in enumerate(order):
            p = 7 * k + j
            wwait(p); a.wait(xt[(k, mt)])
            d = acc1(j, mt)
            c = '0' if k == 0 else f'v[{d}:{d+3}]'
            a(f'v_mfma_f32_16x16x32_bf16 v[{d}:{d+3}], {S.reg(p)}, v[{xr(k & 1, mt)}:{xr(k & 1, mt)+3}], {c}')
            if k == G0 - 1 and n == 3:
                a.wait(tg[-1]); a('s_barrier')
            if layer == 0 and mt == 1 and j < opt.get('rps', 3): S.prefetch(1)
            if not last:
                if 4 <= n < 8: xload(k + 1, n - 4)
            else:
                if mt >= 1 and j == 2: fill += conv_h(mt - 1)
                for _ in range(3):
                    if fill: a(fill.pop(0))
            if mt == 3 and p in STR: S.refill(layer, p)
        for f in fill: a(f)
    stamp(a, opt, f'g1_{layer}')
    if layer == 0 and touch is not None: S.prefetch(99)
    if touch is not None:
        a(f'buffer_load_dword v{vD0}, v{vTP}, s[8:11], s38 offen {touch}\nbuffer_load_dword v{vD1}, v{vTQ}, s[8:11], s38 offen {touch}')
    pend = conv_h(3)
    ht = {}
    hreg = lambda n, mt: XF + 16 * ((n + 1) & 1) + 4 * mt
    def hload(n, mt):
        st = n % 7
        addr, off = (vHa if st == 0 else vH1 + st - 1, 7168 * mt) if st < 4 else (vHB, 7168 * mt + 1024 * st)
        ht[(n, mt)] = a(f'ds_read_b128 v[{hreg(n, mt)}:{hreg(n, mt)+3}], v{addr} offset:{off}')
    for gi, g in enumerate(GROUPS):
        for step in range(7):
            ng = 7 * gi + step
            order = [(j, mt) for mt in range(4) for j in g] if ng == 0 else [(j, mt) for j in g for mt in range(4)]
            for n, (j, mt) in enumerate(order):
                pp = 98 + g2pos(j, step)
                wwait(pp)
                if ng > 0: a.wait(ht[(ng, mt)])
                d = acc2(j, mt)
                c = '0' if step == 0 else f'v[{d}:{d+3}]'
                a(f'v_mfma_f32_16x16x32_bf16 v[{d}:{d+3}], {S.reg(pp)}, v[{hreg(ng, mt)}:{hreg(ng, mt)+3}], {c}')
                if ng == 0:
                    for _ in range(2):
                        if pend: a(pend.pop(0))
                    if n == 8:
                        assert not pend
                        a('s_waitcnt lgkmcnt(0)\ns_barrier')
                        hload(1, 0); hload(1, 1)
                    if n in (9, 10): hload(1, n - 7)
                elif ng < 20 and 2 <= n < 6: hload(ng + 1, n - 2)
                if mt == 3 and pp in STR: S.refill(layer, pp)
                if layer == 0 and mt == 1: S.prefetch(1)
                if step >= 1:
                    for _ in range(2):
                        if pend: a(pend.pop(0))
        assert not pend
        for j in g:
            for aa in range(2):
                d = acc2(j, 2 * aa)
                for i in range(4):
                    pend.append(f'v_cvt_pk_bf16_f32 v{d+i}, v{d+2*i}, v{d+2*i+1}')
                pend.append(f'buffer_store_dwordx4 v[{d}:{d+3}], v{vP}, s[8:11], s{38+aa} offen offset:{256*j} {pmod}')
    stamp(a, opt, f'g2_{layer}')
    for f in pend: a(f)


def conv_phase(a, opt, which, post_barrier):
    vA, vB, vC3, vL15, vL4, vLN = 192, 193, 194, 195, 196, 197
    A0, B0, CA = 64, 128, 48
    for half, qs in (((0, (7, 4, 3, 0)), (1, (6, 5, 2, 1)))[which],):
        qmax = qs[0]
        order = list(range(8))
        def loads(it):
            g0 = order[it]; buf = it & 1
            seq = []
            for i in range(qmax + 1):
                seq += [('A', i), ('B', qmax - i)]
            return [(k, i, (f'ds_read_b128 v[{A0+32*buf+4*i}:{A0+32*buf+4*i+3}], v{vA} offset:{512*i + 64*g0}' if k == 'A' else
                            f'ds_read_b128 v[{B0+32*buf+4*i}:{B0+32*buf+4*i+3}], v{vB} offset:{512*(7-i) + 64*g0}')) for k, i in seq]
        toks = {}
        for k, i, txt in loads(0):
            toks[(0, k, i)] = a(txt)
        for it in range(8):
            buf = it & 1
            nxt = loads(it + 1) if it < 7 else []
            if post_barrier: post_barrier(it)
            pairs = [(q, g1) for g1 in range(qmax + 1) for q in qs if q >= g1]
            for n, (q, g1) in enumerate(pairs):
                m = q - g1
                a.wait(toks[(it, 'A', g1)], toks[(it, 'B', m)])
                acc = CA + 4 * qs.index(q)
                c = '0' if (it == 0 and g1 == 0) else f'v[{acc}:{acc+3}]'
                a(f'v_mfma_f32_16x16x32_bf16 v[{acc}:{acc+3}], v[{A0+32*buf+4*g1}:{A0+32*buf+4*g1+3}], v[{B0+32*buf+4*m}:{B0+32*buf+4*m+3}], {c}')
                if nxt:
                    k, i, txt = nxt.pop(0)
                    toks[(it + 1, k, i)] = a(txt)
            assert not nxt
        stamp(a, opt, 'mma')
        a(f'v_lshlrev_b32 v198, 5, v{vL15}\nv_lshl_add_u32 v198, v{vL4}, 3, v198')
        a(f's_add_u32 s26, s28, {4088 - 3584}\nv_sub_u32 v199, s26, v198')
        tu = [a(f'ds_read_b64 v[{64+2*i}:{65+2*i}], v199 offset:{512*(7-q)}') for i, q in enumerate(qs)]
        a(f's_lshl_b32 s26, s22, 12\ns_add_u32 s26, s26, {KC_Y}\nv_lshl_add_u32 v198, v198, 1, s26\nv_add_u32 v199, s26, v{vXR}')
        for i, q in enumerate(qs):
            acc = CA + 4 * i
            a.wait(tu[i])
            lo, hi = 64 + 2 * i, 65 + 2 * i
            a(f'v_and_b32 v72, 0xffff0000, v{hi}\nv_lshlrev_b32 v73, 16, v{hi}\nv_and_b32 v74, 0xffff0000, v{lo}\nv_lshlrev_b32 v75, 16, v{lo}')
            for r in range(4):
                a(f'v_fmac_f32 v{acc+r}, s58, v{72+r}')
            a(f'v_cvt_pk_bf16_f32 v{acc}, v{acc}, v{acc+1}\nv_cvt_pk_bf16_f32 v{acc+2}, v{acc+2}, v{acc+3}')
            a(f'v_mov_b32 v{acc+1}, s42\nv_mov_b32 v{acc+3}, s42')
            a(f'ds_write_b128 v198, v[{acc}:{acc+3}] offset:{1024*i}')
        a('s_waitcnt lgkmcnt(0)')
        ty = [a(f'ds_read_b128 v[{64+4*i}:{67+4*i}], v199 offset:{1024*i}') for i in range(4)]
        a(f's_lshl_b32 s26, s30, 1\ns_add_u32 s26, s26, {YT}')
        for i, q in enumerate(qs):
            a(f's_add_u32 s3, s26, {1024*q}')
            a.wait(ty[i]); a(f'buffer_store_dwordx4 v[{64+4*i}:{67+4*i}], v{vXR}, s[8:11], s3 offen sc1')


def ffn_addresses(a):
    t2, q, mm, kap, oob, row, t = 204, 205, 206, 207, 208, 209, 210
    a(f'v_lshrrev_b32 v{t2}, 4, v0\nv_bfe_u32 v{q}, v0, 2, 2\nv_and_b32 v{mm}, 3, v0')
    a(f's_lshl_b32 s26, s22, 2\nv_add_u32 v{kap}, s26, v{t2}\nv_cmp_gt_u32 vcc, 14, v{kap}\nv_mov_b32 v{oob}, {OOB}')
    a('s_lshl_b32 s26, s20, 6\ns_lshl_b32 s3, s21, 3\ns_add_u32 s26, s26, s3')
    a(f'v_lshl_add_u32 v{row}, v{mm}, 1, s26\nv_mul_u32_u24 v{t}, 896, v{row}\nv_lshl_add_u32 v{t}, v{kap}, 6, v{t}\nv_lshl_add_u32 v{t}, v{q}, 4, v{t}')
    a(f'v_cndmask_b32 v{vQ}, v{oob}, v{t}, vcc\ns_mov_b64 s[16:17], vcc')
    a(f'v_lshlrev_b32 v{t}, 18, v{kap}\nv_lshl_add_u32 v{t}, v{q}, 16, v{t}\nv_lshl_add_u32 v{t}, v{row}, 2, v{t}\nv_cndmask_b32 v{vY}, v{oob}, v{t}, vcc')
    a('s_mul_i32 s33, s20, 57344\ns_lshr_b32 s26, s21, 2\ns_mul_i32 s26, s26, 28672\ns_add_u32 s26, s26, s33\ns_and_b32 s3, s21, 3\ns_lshl_b32 s3, s3, 6\ns_add_u32 s26, s26, s3')
    a(f'v_lshlrev_b32 v{t}, 10, v{kap}\nv_lshl_add_u32 v{t}, v{q}, 8, v{t}\nv_lshl_add_u32 v{t}, v{mm}, 4, v{t}\nv_add_u32 v{t}, s26, v{t}\nv_cndmask_b32 v{vXS}, v{oob}, v{t}, vcc')
    a(f'v_add_u32 v{vXG}, s33, v{vXR}')
    a(f's_mul_i32 s33, s20, 458752\ns_mul_i32 s26, s21, 57344\ns_add_u32 s26, s26, s33\nv_and_b32 v{t}, 15, v0\nv_lshlrev_b32 v{t}, 4, v{t}\nv_lshl_add_u32 v{t}, v{kap}, 9, v{t}\nv_add_u32 v{t}, s26, v{t}\nv_cndmask_b32 v{vPR}, v{oob}, v{t}, vcc')
    a(f's_mul_i32 s3, s22, 14336\ns_add_u32 s26, s26, s3\nv_lshl_add_u32 v{vTP}, v0, 7, s26\nv_min_u32 v{vTQ}, 47, v0\ns_add_u32 s26, s26, 8192\nv_lshl_add_u32 v{vTQ}, v{vTQ}, 7, s26')
    a(f's_mul_i32 s26, s21, 7168\ns_add_u32 s26, s26, s33\ns_mul_i32 s3, s22, 1792\ns_add_u32 s26, s26, s3')
    a(f'v_mul_u32_u24 v{t}, 57344, v{q}\nv_lshl_add_u32 v{t}, v{t2}, 6, v{t}\nv_lshl_add_u32 v{t}, v{mm}, 4, v{t}\nv_add_u32 v{vP}, s26, v{t}')
    a(f's_lshl_b32 s26, s21, 2\ns_add_u32 s26, s26, s22\ns_mul_i32 s26, s26, 150528\nv_add_u32 v{vW}, s26, v{vXR}')
    a(f'v_add_u32 v{vHB}, {L_H}, v{vXR}')
    for st in range(1, 4):
        a(f's_xor_b32 s26, s22, {st}\ns_lshl_b32 s26, s26, 10\nv_add_u32 v{vH1+st-1}, s26, v{vHB}')
    a(f's_lshl_b32 s26, s22, 10\nv_add_u32 v{vHa}, s26, v{vHB}')
    a(f's_lshr_b32 s26, s22, 1\ns_lshl_b32 s26, s26, 10\ns_and_b32 s3, s22, 1\ns_lshl_b32 s3, s3, 3\ns_add_u32 s26, s26, s3\ns_add_u32 s26, s26, 4096\nv_add_u32 v{vHb}, s26, v{vHB}')
    a(f's_lshl_b32 s26, s22, 2\ns_add_u32 s26, s26, 6144\nv_add_u32 v{vHc}, s26, v{vHB}')
    a(f's_lshl_b32 s26, s22, 2\ns_add_u32 s26, s26, {L_ST}\nv_lshlrev_b32 v{t}, 6, v{mm}\nv_lshl_add_u32 v{vST}, v{t2}, 4, v{t}\nv_add_u32 v{vST}, s26, v{vST}\nv_add_u32 v{vSR}, {L_ST}, v{t}')
    a(f'v_mov_b32 v{vEPS}, {f2u(1e-5)}\ns_mov_b32 s36, {f2u(1/448.)}\ns_mov_b32 s40, 0x3f80\ns_mov_b32 s41, 0x3f800000')


def q_and_touch(a, touch):
    a(f's_mov_b32 s4, s56\ns_mov_b32 s5, s57\ns_mov_b32 s6, {XBYTES}')
    tq = [a(f'buffer_load_dwordx4 v[{YP+4*e}:{YP+4*e+3}], v{vQ}, s[4:7], 0 offen offset:{896*e} nt') for e in range(2)]
    for e in range(2 if touch else 0):
        a(f's_mov_b32 s33, {XNL + 14336*e}\nbuffer_load_dword v{vD0}, v{vXS}, s[8:11], s33 offen sc1')
    return tq


def flag_touch(a):
    a(f's_lshl_b32 s26, s20, 8\ns_add_u32 s26, s26, {F_X0}\nv_mov_b32 v211, s26')
    for i, (base, sh) in enumerate(((F_P, 7), (F_P + 4096, 7), (F_X1, 7))):
        a(f's_lshl_b32 s26, s20, {sh}\ns_add_u32 s26, s26, {base}\nv_writelane_b32 v211, s26, {1+i}')
    a(f's_lshl_b32 s26, s24, 8\ns_add_u32 s26, s26, {FU_L}')
    for i in range(2):
        a(f'v_writelane_b32 v211, s26, {4+i}\ns_add_u32 s26, s26, 128')
    a(f'buffer_load_dword v{vD0}, v211, s[8:11], 0 offen sc1')


def code_prefetch(a):
    a('s_getpc_b64 s[4:5]\nL_pc:\ns_sub_u32 s4, s4, L_pc-' + NAME + '_kernel\ns_subb_u32 s5, s5, 0\ns_mov_b32 s6, L_code_end-' + NAME + '_kernel')
    a('s_lshl_b32 s26, s25, 11\ns_and_b32 s3, s22, 1\ns_lshl_b32 s3, s3, 10\ns_add_u32 s26, s26, s3\nv_and_b32 v212, 7, v0\nv_lshl_add_u32 v212, v212, 7, s26')
    a(f'buffer_load_dword v{vD0}, v212, s[4:7], 0 offen')


def make_tag(a):
    a(f's_mul_i32 s42, s43, 0x9E3779B1\ns_add_u32 s42, s42, 0x7F4A7C15\ns_and_b32 s42, s42, -16\ns_or_b32 s23, s23, s42\nv_mov_b32 v{vTAG}, s23')


def gen(a, opt):
    NT = opt.get('nt', 'nt') if opt.get('nt', 'nt') != 'none' else ''
    kernel_begin(a, NAME + '_kernel')
    a('s_cmp_ge_u32 s2, 256\ns_cbranch_scc1 L_end')
    stamp(a, opt, 'start')
    a('s_load_dwordx8 s[28:35], s[0:1], 8')
    a('s_load_dwordx2 s[8:9], s[0:1], 96')
    a('s_load_dwordx2 s[56:57], s[0:1], 0')
    a('s_load_dwordx2 s[38:39], s[0:1], 40')
    a('s_load_dwordx4 s[44:47], s[0:1], 56')
    a('s_load_dwordx4 s[52:55], s[0:1], 72')
    a('s_getreg_b32 s23, hwreg(HW_REG_XCC_ID, 0, 4)\ns_add_u32 s23, s23, 1')
    a(f'v_lshrrev_b32 v48, 6, v0\nv_mov_b32 v49, v0\nv_and_b32 v0, 63, v0\nv_readfirstlane_b32 s22, v48\nv_lshlrev_b32 v{vXR}, 4, v0')
    a('s_and_b32 s24, s2, 7\ns_lshr_b32 s25, s2, 3')
    a('s_lshl_b32 s20, s24, 2\ns_lshr_b32 s21, s2, 6\ns_add_u32 s20, s20, s21\ns_and_b32 s21, s25, 7')
    a(f's_mov_b32 s10, {WS_BYTES}\ns_mov_b32 s11, 0x20000\ns_mov_b32 s7, 0x20000\ns_mov_b32 s15, 0x20000\ns_mov_b32 s19, 0x20000')
    a('s_cmp_eq_u32 s24, 7\ns_cbranch_scc1 L_spare')
    a('v_and_b32 v50, 31, v0\nv_lshrrev_b32 v51, 5, v49')
    a('s_lshl_b32 s26, s25, 6\nv_lshl_add_u32 v52, v51, 3, s26')
    a('s_lshl_b32 s26, s24, 7\nv_lshl_add_u32 v53, v50, 2, s26')
    a('v_mul_u32_u24 v54, 896, v52\nv_add_u32 v54, v54, v53')
    a(f'v_subrev_u32 v55, 2688, v54\nv_mov_b32 v56, {OOB}\nv_cmp_eq_u32 vcc, 0, v52\nv_lshlrev_b32 v57, 2, v53\nv_cndmask_b32 v55, v55, v56, vcc')
    a('s_movk_i32 s26, 4480')
    a(f's_mov_b32 s14, {XBYTES}\ns_mov_b32 s18, {XBYTES}\ns_movk_i32 s6, 3584')
    a('s_waitcnt lgkmcnt(0)')
    stamp(a, opt, 'ka')
    a('s_mov_b32 s12, s28\ns_mov_b32 s13, s29\ns_mov_b32 s16, s30\ns_mov_b32 s17, s31\ns_mov_b32 s4, s32\ns_mov_b32 s5, s33')
    K0, V0, SH = 64, 76, 60
    tk = []
    for j in range(3):
        tk.append(a(f'buffer_load_dword v{K0+j}, v55, s[12:15], 0 offen offset:{896*j} {NT}'))
    for j in range(8):
        so, off = ('0', 896 * j) if j < 5 else ('s26', 896 * (j - 5))
        tk.append(a(f'buffer_load_dword v{K0+3+j}, v54, s[12:15], {so} offen offset:{off} {NT}'))
    tw = a(f'buffer_load_dwordx4 v[{SH}:{SH+3}], v57, s[4:7], 0 offen')
    tv = []
    for j in range(8):
        so, off = ('0', 896 * j) if j < 5 else ('s26', 896 * (j - 5))
        tv.append(a(f'buffer_load_dword v{V0+j}, v54, s[16:19], {so} offen offset:{off} {NT}'))
    stamp(a, opt, 'kvi')
    a('s_load_dword s43, s[8:9], 0x0')
    a('s_lshl_b32 s26, s24, 5\ns_add_u32 s26, s26, s25\ns_lshl_b32 s26, s26, 2\ns_load_dword s58, s[38:39], s26')
    a('s_and_b32 s51, s22, 1\ns_lshr_b32 s27, s22, 1')
    a('s_lshl_b32 s30, s24, 5\ns_add_u32 s30, s30, s25\ns_lshl_b32 s30, s30, 1\ns_add_u32 s30, s30, s51\ns_lshl_b32 s30, s30, 12')
    a(f's_mul_i32 s28, s51, {KC_UP}\ns_mul_i32 s29, s51, {KC_HP}\ns_add_u32 s29, s29, {KC_H + 256}')
    a(f's_lshl_b32 s37, s24, 18\ns_lshl_b32 s3, s25, 7\ns_sub_u32 s37, s37, s3\ns_add_u32 s37, s37, {4096 - 128}\ns_lshl_b32 s3, s51, 17\ns_add_u32 s37, s37, s3')
    vA, vB, vC3, vL15, vL4 = 192, 193, 194, 195, 196

    def kv_compute():
        WT, KF, VF, UF = 88, 96, 118, 120
        a.wait(tw)
        stamp(a, opt, 'kv')
        for tau in range(4):
            for c in range(2):
                src = SH + 2 * c + (tau >> 1)
                a(f'v_lshlrev_b32 v{WT+2*tau+c}, 16, v{src}' if tau % 2 == 0 else f'v_and_b32 v{WT+2*tau+c}, 0xffff0000, v{src}')
        for j in range(11):
            a(f'v_lshlrev_b32 v{KF+2*j}, 16, v{K0+j}\nv_and_b32 v{KF+2*j+1}, 0xffff0000, v{K0+j}')
        for j in range(8):
            u = UF + 2 * j
            a(f'v_pk_mul_f32 v[{u}:{u+1}], v[{KF+2*(j+3)}:{KF+2*(j+3)+1}], v[{WT}:{WT+1}]')
            for tau in range(1, 4):
                a(f'v_pk_fma_f32 v[{u}:{u+1}], v[{KF+2*(j+3-tau)}:{KF+2*(j+3-tau)+1}], v[{WT+2*tau}:{WT+2*tau+1}], v[{u}:{u+1}]')
        for j in range(8):
            u = UF + 2 * j
            a.wait(tv[j])
            a(f'v_lshlrev_b32 v{VF}, 16, v{V0+j}\nv_and_b32 v{VF+1}, 0xffff0000, v{V0+j}')
            a(f'v_pk_mul_f32 v[{u}:{u+1}], v[{u}:{u+1}], v[{VF}:{VF+1}]')
        for c in range(2):
            for n in range(4):
                a(f'v_cvt_pk_bf16_f32 v{64+4*c+n}, v{UF+2*(7-2*n)+c}, v{UF+2*(6-2*n)+c}')
        a('ds_write_b128 v59, v[64:67]\nds_write_b128 v59, v[68:71] offset:144')
        a('s_waitcnt lgkmcnt(0)\ns_barrier')
        stamp(a, opt, 'kv2')

    def conv_addresses():
        def copybase(dst, c):
            a(f's_mov_b32 s26, {sum(DELTA[i] << (4*i) for i in range(8))}\nv_lshlrev_b32 v199, 2, v{c}\nv_lshrrev_b32 v199, v199, s26\nv_and_b32 v199, 15, v199')
            a(f'v_mul_u32_u24 v{dst}, 4352, v{c}\nv_lshl_add_u32 v{dst}, v199, 4, v{dst}\nv_add_u32 v{dst}, s29, v{dst}')
        a('v_and_b32 v198, 7, v0'); copybase(vC3, 198)
        a(f'v_and_b32 v{vL15}, 15, v0\nv_add_u32 v197, 1, v{vL15}\nv_and_b32 v198, 7, v197'); copybase(vA, 198)
        a(f'v_lshrrev_b32 v197, 3, v197\nv_lshrrev_b32 v{vL4}, 4, v0\nv_add_u32 v197, v197, v{vL4}\nv_lshl_add_u32 v{vA}, v197, 4, v{vA}\nv_subrev_u32 v{vA}, 32, v{vA}')
        a(f'v_lshlrev_b32 v{vB}, 4, v{vL4}\nv_lshlrev_b32 v197, 5, v{vL15}\nv_sub_u32 v{vB}, v{vB}, v197\ns_add_u32 s26, s28, 480\nv_add_u32 v{vB}, s26, v{vB}')

    def d_value():
        a('s_cmp_eq_u32 s51, 0\ns_cselect_b32 s26, 16, 0\ns_lshl_b32 s58, s58, s26\ns_and_b32 s58, s58, 0xffff0000')

    a(f'v_mul_u32_u24 v59, 288, v50\nv_lshlrev_b32 v58, 4, v51\nv_sub_u32 v59, v59, v58\nv_add_u32 v59, {L_UB + 112}, v59')
    a('s_cmp_eq_u32 s27, 0\ns_cbranch_scc0 L_hw')
    snap = a.snapshot()
    a('v_lshrrev_b32 v140, 3, v0\nv_and_b32 v142, 7, v0\nv_lshlrev_b32 v142, 4, v142\nv_lshl_add_u32 v141, v140, 12, v142')
    a(f'v_mul_u32_u24 v140, 144, v140\nv_add_u32 v140, v140, v142\ns_mul_i32 s26, s51, {32*144}\ns_add_u32 s26, s26, {L_UB}\nv_add_u32 v140, s26, v140')
    ffn_addresses(a)
    conv_addresses()
    a(f's_lshl_b32 s26, s24, 8\ns_lshl_b32 s3, s25, 3\ns_add_u32 s3, s3, s26\ns_lshl_b32 s33, s51, 2\ns_add_u32 s3, s3, s33\nv_mov_b32 v{vFW}, s3\nv_lshl_add_u32 v{vFR}, v0, 2, s26')
    a('v_mov_b32 v200, 0\nv_mov_b32 v201, 0\nv_mov_b32 v202, 0\nv_mov_b32 v203, 0')
    a(f'v_subrev_u32 v197, 32, v{vC3}\nv_bfe_u32 v198, v0, 3, 1\nv_lshl_add_u32 v197, v198, 4, v197')
    a(f's_add_u32 s26, s28, 4096\nv_add_u32 v198, s26, v{vXR}\nv_cmp_gt_u32 vcc, 32, v0\nv_cndmask_b32 v197, v197, v198, vcc')
    a('s_mov_b32 exec_lo, 0x3fffffff\ns_mov_b32 exec_hi, 0x1ff\nds_write_b128 v197, v[200:203]\ns_mov_b64 exec, -1')
    stamp(a, opt, 'early')
    kv_compute()
    UO = 224
    tb = [a(f'ds_read_b128 v[{UO+4*i}:{UO+4*i+3}], v140 offset:{8*144*i}') for i in range(4)]
    make_tag(a)
    def tile_out(base, mod):
        a(f's_add_u32 s26, s37, {base}')
        for i in range(4):
            a.wait(tb[i]); a(f'buffer_store_dwordx4 v[{UO+4*i}:{UO+4*i+3}], v141, s[8:11], s26 offen {mod}')
            if i < 3: a('s_add_u32 s26, s26, 0x8000')
    tile_out(UR, '')
    stamp(a, opt, 'ust')
    d_value()
    a(f's_mov_b32 s33, {FU_L}\ns_waitcnt vmcnt(0)')
    flag_store(a, vFW, 's33', '')
    stamp(a, opt, 'uflag')
    L = 'L_pu'
    a(f's_mov_b32 s34, 0\ns_mov_b32 s35, {UR}\ns_lshl_b32 s18, s24, 15\ns_add_u32 s18, s18, {UR}')
    a(f'{L}:')
    a(f's_mov_b32 s33, {FU_L}\nbuffer_load_dword v78, v{vFR}, s[8:11], s33 offen sc1')
    a('s_waitcnt vmcnt(0)')
    a(f'v_cmp_ne_u32 vcc, s23, v78\ns_cbranch_vccz {L}_x')
    a(f's_add_u32 s34, s34, 1\ns_cmp_lt_u32 s34, 24\ns_cbranch_scc1 {L}')
    a(f's_cmp_eq_u32 s34, 24\ns_cbranch_scc0 {L}_n')
    tile_out(URG, 'sc1')
    a(f's_mov_b32 s33, {FU_G}\ns_waitcnt vmcnt(0)')
    flag_store(a, vFW, 's33', 'sc1')
    a(f'{L}_n:')
    a(f's_cmp_gt_u32 s34, {SPIN}\ns_cbranch_scc1 {L}_x')
    a(f's_mov_b32 s33, {FU_G}\nbuffer_load_dword v78, v{vFR}, s[8:11], s33 offen sc1')
    a('s_waitcnt vmcnt(0)\nv_and_b32 v79, -16, v78')
    a(f'v_cmp_ne_u32 vcc, s42, v79\ns_cbranch_vccnz {L}')
    a(f's_mov_b32 s35, {URG}\nv_cmp_ne_u32 vcc, s23, v78\ns_cbranch_vccz {L}_x\ns_mov_b32 s18, {XNL}')
    a(f'{L}_x:')
    a('s_waitcnt vmcnt(0)')
    stamp(a, opt, 'upoll')
    a('s_add_u32 s3, s30, s35\ns_mov_b32 s26, s28')
    for i in range(4):
        a('s_mov_b32 m0, s26\ns_add_u32 s26, s26, 1024')
        tud = a(f'buffer_load_dwordx4 v{vXR}, s[8:11], s3 offen sc1 lds\ns_add_u32 s3, s3, 1024')
    a(f'v_mov_b32 v78, s18\nv_mov_b32 v79, {L_LOC}\nds_write_b32 v79, v78')
    a.wait(tud)
    stamp(a, opt, 'hcp')
    a('s_waitcnt lgkmcnt(0)\ns_barrier')
    q_and_touch(a, False)
    stamp(a, opt, 'cstart')
    conv_phase(a, opt, 0, None)
    stamp(a, opt, 'yst')
    a('s_branch L_join')
    a('L_hw:'); a.restore(snap)
    code_prefetch(a)
    a(f's_add_u32 s26, s37, {UR}\nv_and_b32 v142, 31, v0\nv_lshlrev_b32 v142, 12, v142\nbuffer_load_dword v{vD1}, v142, s[8:11], s26 offen {opt.get("utouch", "sc1").replace("_", " ")}')
    flag_touch(a)
    a(f's_mov_b32 s4, s34\ns_mov_b32 s5, s35\ns_mov_b32 s6, {448*4096}')
    a(f'v_add_u32 v140, s30, v{vXR}\nv_subrev_u32 v141, 16, v140\nv_cmp_eq_u32 vcc, 0, v0\nv_cndmask_b32 v142, v141, v56, vcc')
    HL = 144
    th = []
    for st in range(4):
        a(f'buffer_load_dwordx4 v[{HL+8*st}:{HL+8*st+3}], v{142 if st == 0 else 141}, s[4:7], 0 offen offset:{1024*st} {NT}')
        th.append(a(f'buffer_load_dwordx4 v[{HL+8*st+4}:{HL+8*st+7}], v140, s[4:7], 0 offen offset:{1024*st} {NT}'))
    a('s_lshl_b32 s26, s24, 5\ns_add_u32 s26, s26, s25\ns_and_b32 s48, s26, 3\ns_lshl_b32 s48, s48, 1\ns_add_u32 s48, s48, s51\ns_lshr_b32 s50, s26, 2')
    a('v_mul_u32_u24 v176, 2341, v0\nv_lshrrev_b32 v176, 16, v176\nv_mul_u32_u24 v177, 28, v176\nv_sub_u32 v177, v0, v177')
    a('v_mul_u32_u24 v178, 3584, v176\nv_lshl_add_u32 v178, v177, 4, v178\nv_cmp_gt_u32 vcc, 56, v0\nv_cndmask_b32 v222, v56, v178, vcc')
    a(f's_mul_i32 s26, s50, {8*3584}\ns_mul_i32 s3, s48, 448\ns_add_u32 s26, s26, s3')
    a(f's_mov_b32 s12, s44\ns_mov_b32 s13, s45\ns_mov_b32 s44, s46\ns_mov_b32 s45, s47\ns_mov_b32 s14, {448*3584}\ns_mov_b32 s46, s14\ns_mov_b32 s47, 0x20000')
    WL = 224
    tl = []
    a('s_mov_b32 s59, s26')
    def wloads():
        for it in range(4):
            tl.append((a(f'buffer_load_dwordx4 v[{WL+8*it}:{WL+8*it+3}], v222, s[12:15], s59 offen {NT}'),
                       a(f'buffer_load_dwordx4 v[{WL+8*it+4}:{WL+8*it+7}], v222, s[44:47], s59 offen {NT}')))
            a(f's_add_u32 s59, s59, {2*3584}')
    ffn_addresses(a)
    conv_addresses()
    stamp(a, opt, 'early')
    kv_compute()
    make_tag(a)
    d_value()
    a(f'v_add_u32 v140, s29, v{vXR}')
    for st in range(4):
        d = HL + 8 * st; e = 88; o = 96
        a.wait(th[st])
        cb = lambda c: c * 4352 + 16 * DELTA[c] + 1024 * st - (16 if c else 0)
        a(f'ds_write_b128 v140, v[{d+4}:{d+7}] offset:{cb(0)}')
        for i in range(1, 4): a(f'v_mov_b32 v{o+i-1}, v{d+i}')
        a(f'ds_write_b128 v140, v[{d+2}:{d+5}] offset:{cb(4)}')
        for i in range(4, 7): a(f'v_mov_b32 v{o+i-1}, v{d+i}')
        a(f'ds_write_b128 v140, v[{o}:{o+3}] offset:{cb(2)}')
        for i in range(3): a(f'v_alignbit_b32 v{e+i}, v{d+i+1}, v{d+i}, 16')
        a(f'ds_write_b128 v140, v[{o+2}:{o+5}] offset:{cb(6)}')
        for i in range(3, 6): a(f'v_alignbit_b32 v{e+i}, v{d+i+1}, v{d+i}, 16')
        a(f'ds_write_b128 v140, v[{e}:{e+3}] offset:{cb(1)}')
        for i in range(1, 4): a(f'v_alignbit_b32 v{o+8+i-1}, v{d+i+1}, v{d+i}, 16')
        a(f'ds_write_b128 v140, v[{e+2}:{e+5}] offset:{cb(5)}')
        for i in range(4, 7): a(f'v_alignbit_b32 v{o+8+i-1}, v{d+i+1}, v{d+i}, 16')
        a(f'ds_write_b128 v140, v[{o+8}:{o+11}] offset:{cb(3)}')
        a(f'ds_write_b128 v140, v[{o+10}:{o+13}] offset:{cb(7)}')
    stamp(a, opt, 'ust')
    a(f's_mul_i32 s26, s51, {8*W1P}\ns_add_u32 s26, s26, {L_WS}')
    a(f'v_mul_u32_u24 v220, {W1P}, v176\nv_lshl_add_u32 v220, v177, 5, v220\nv_add_u32 v220, s26, v220')
    a(f'v_lshrrev_b32 v142, 4, v0\nv_bfe_u32 v143, v0, 2, 2\nv_mul_u32_u24 v221, {W1P}, v143\nv_mul_u32_u24 v143, 224, v142\nv_add_u32 v221, v221, v143')
    a(f'v_and_b32 v143, 3, v0\nv_lshl_add_u32 v221, v143, 3, v221\nv_add_u32 v221, s26, v221')
    a(f's_mov_b32 s26, 150528\nv_mul_lo_u32 v223, v142, s26\nv_and_b32 v143, 15, v0\nv_lshl_add_u32 v223, v143, 4, v223')
    a(f's_lshl_b32 s26, s48, 8\ns_lshl_b32 s3, s50, 2\ns_add_u32 s26, s26, s3\ns_add_u32 s26, s26, {F_W}\nv_mov_b32 v213, s26')
    a(f's_mul_i32 s48, s48, {4*150528}\ns_lshr_b32 s3, s50, 2\ns_mul_i32 s3, s3, 7168\ns_add_u32 s48, s48, s3\ns_and_b32 s3, s50, 3\ns_lshl_b32 s3, s3, 8\ns_add_u32 s48, s48, s3\ns_add_u32 s48, s48, {WW}\ns_add_u32 s49, s48, 4096')
    a('s_waitcnt lgkmcnt(0)')
    stamp(a, opt, 'uflag'); stamp(a, opt, 'upoll'); stamp(a, opt, 'hcp')
    a('s_barrier')
    stamp(a, opt, 'cstart')
    wloads()
    q_and_touch(a, False)
    a(f'v_mov_b32 v79, {L_LOC}')
    a.wait(a('ds_read_b32 v78, v79'))
    a('v_readfirstlane_b32 s18, v78')
    WO = 224
    tr = []; tws = []
    WP = opt.get('wproc', 5)
    def hook(it):
        if it == WP:
            a('s_mov_b32 exec_hi, 0xffffff')
            for i in range(4):
                g, u = WL + 8 * i, WL + 8 * i + 4
                a.wait(*tl[i])
                a(f'ds_write2_b32 v220, v{g}, v{u} offset0:0 offset1:1\nds_write2_b32 v220, v{g+1}, v{u+1} offset0:2 offset1:3')
                a(f'ds_write2_b32 v220, v{g+2}, v{u+2} offset0:4 offset1:5\nds_write2_b32 v220, v{g+3}, v{u+3} offset0:6 offset1:7')
                if i < 3: a(f'v_add_u32 v220, {2*W1P}, v220')
            a('s_mov_b64 exec, -1')
        if it == WP + 1:
            for j in range(7):
                a(f'ds_read_b64_tr_b16 v[{WO+4*j}:{WO+4*j+1}], v221 offset:{32*j}')
                tr.append(a(f'ds_read_b64_tr_b16 v[{WO+4*j+2}:{WO+4*j+3}], v221 offset:{32*j + 4*W1P}'))
        if it == WP + 2:
            for j in range(7):
                a.wait(tr[j])
                tws.append(a(f'buffer_store_dwordx4 v[{WO+4*j}:{WO+4*j+3}], v223, s[8:11], {"s48" if j < 4 else "s49"} offen offset:{1024*(j & 3)} sc1'))
    conv_phase(a, opt, 1, hook)
    a.wait(tws[-1])
    flag_store(a, 213, '0', 'sc1')
    stamp(a, opt, 'yst')
    a('s_branch L_join')
    a('L_spare:')
    a.reset_counters()
    a('s_waitcnt lgkmcnt(0)')
    a('s_load_dword s43, s[8:9], 0x0')
    a(f's_mov_b32 s12, s52\ns_mov_b32 s13, s53\ns_mov_b32 s14, {1792*896}')
    a('v_lshrrev_b32 v72, 4, v0\nv_lshlrev_b32 v72, 1, v72\nv_bfe_u32 v73, v0, 2, 1\nv_add_u32 v72, v72, v73\nv_bfe_u32 v73, v0, 3, 1\nv_lshl_add_u32 v72, v73, 3, v72')
    a('v_mul_u32_u24 v72, 896, v72\nv_and_b32 v73, 3, v0\nv_lshl_add_u32 v72, v73, 4, v72')
    for rep in range(2):
        a(f's_add_u32 s26, s25, {32*rep}\ns_and_b32 s{48+2*rep}, s26, 7\ns_lshr_b32 s{49+2*rep}, s26, 3')
        k2 = f's{49+2*rep}'; sl = f's{48+2*rep}'
        a(f's_mul_i32 s28, {k2}, 7\ns_add_u32 s28, s28, s22')
        a(f's_sub_u32 s29, {k2}, 4\ns_lshl_b32 s29, s29, 1\ns_lshr_b32 s30, s22, 1\ns_add_u32 s29, s29, s30\ns_mul_i32 s29, s29, 7')
        a('s_and_b32 s30, s22, 1\ns_add_u32 s29, s29, s30\ns_add_u32 s29, s29, 4')
        a(f's_cmp_lt_u32 {k2}, 4\ns_cselect_b32 s28, s28, s29')
        a(f's_mul_i32 s29, s22, 7\ns_add_u32 s29, s29, 6\ns_cmp_ge_u32 {k2}, 6\ns_cselect_b32 s28, s29, s28')
        a(f's_mul_i32 s29, {sl}, 28\ns_add_u32 s28, s28, s29\ns_mul_i32 s28, s28, 7168')
        a(f's_mul_i32 s29, s22, 7168\ns_add_u32 s29, s29, {28672*rep}')
        for i in range(7):
            a('s_mov_b32 m0, s29\ns_add_u32 s29, s29, 1024')
            tdm = a(f'buffer_load_dwordx4 v{vXR}, s[12:15], s28 offen {NT} lds\ns_add_u32 s28, s28, 1024')
    ffn_addresses(a)
    flag_touch(a)
    q_and_touch(a, True)
    a(f's_mov_b32 s18, {XNL}')
    a.wait(tdm)
    a('s_waitcnt lgkmcnt(0)\ns_barrier')
    make_tag(a)
    for rep in range(2):
        k2 = f's{49+2*rep}'; sl = f's{48+2*rep}'
        a(f's_xor_b32 s35, {k2}, s22\ns_cmp_lt_u32 {k2}, 4\ns_cselect_b32 s35, s35, {k2}')
        a(f's_lshl_b32 s28, {sl}, 2\ns_add_u32 s28, s28, s22\ns_mul_i32 s28, s28, 150528\ns_add_u32 s28, s28, {WW + 98*1024}')
        a(f's_cmp_ge_u32 {k2}, 7\ns_cselect_b32 s28, {OOB}, s28\ns_mul_i32 s29, s22, 7')
        tr = []
        for j in range(7):
            a(f's_add_u32 s26, s29, {j}\ns_lshr_b32 s3, s26, 1\ns_lshl_b32 s3, s3, 6\ns_and_b32 s26, s26, 1\ns_lshl_b32 s26, s26, 3\ns_add_u32 s26, s26, s3\ns_add_u32 s26, s26, {28672*rep}')
            a(f'v_add_u32 v73, s26, v72')
            o = 80 + 28 * rep + 4 * j
            a(f'ds_read_b64_tr_b16 v[{o}:{o+1}], v73')
            tr.append(a(f'ds_read_b64_tr_b16 v[{o+2}:{o+3}], v73 offset:14336'))
        for j in range(7):
            g = [g for g in GROUPS if j in g][0]
            o = 80 + 28 * rep + 4 * j
            a(f's_mul_i32 s26, s35, {1024*len(g)}\ns_add_u32 s26, s26, s28\ns_add_u32 s26, s26, {1024*g2pos(j, 0)}')
            a.wait(tr[j])
            a(f'buffer_store_dwordx4 v[{o}:{o+3}], v{vXR}, s[8:11], s26 offen sc1')
    a('s_waitcnt vmcnt(0)\ns_barrier')
    for rep in range(2):
        k2 = f's{49+2*rep}'; sl = f's{48+2*rep}'
        a(f's_lshl_b32 s26, {sl}, 8\ns_lshl_b32 s3, {k2}, 2\ns_add_u32 s26, s26, s3\ns_add_u32 s26, s26, {F_W + 224}')
        a(f's_cmp_ge_u32 {k2}, 7\ns_cselect_b32 s26, {OOB}, s26\ns_cmp_eq_u32 s22, 0\ns_cselect_b32 s26, s26, {OOB}\nv_mov_b32 v213, s26')
        flag_store(a, 213, '0', 'sc1')
    if opt.get('stamps'):
        for n in list(STN[1:]): stamp(a, opt, n)
    a('L_join:')
    a.vm_done = a.vm_issued - 5
    a(f's_lshl_b32 s26, s21, 8\ns_add_u32 s26, s26, {F_W}\nv_min_u32 v219, 62, v0\nv_lshl_add_u32 v219, v219, 2, s26')
    a('s_waitcnt vmcnt(4)')
    for e in range(2):
        for i in range(4):
            a(f'v_lshlrev_b32 v{X+8*e+2*i}, 16, v{YP+4*e+i}\nv_and_b32 v{X+8*e+2*i+1}, 0xffff0000, v{YP+4*e+i}')
    stats(a, 0)
    norm_to(a, Z)
    a(f's_mov_b32 s52, s54\ns_mov_b32 s53, s55\ns_mov_b32 s54, {XBYTES}\ns_mov_b32 s55, 0x20000')
    a(f's_lshl_b32 s26, s21, 4\ns_lshl_b32 s3, s22, 2\ns_add_u32 s26, s26, s3\ns_lshl_b32 s3, s20, 8\ns_add_u32 s26, s26, s3\nv_mov_b32 v{vFW}, s26\nv_lshl_add_u32 v{vFR}, v0, 2, s3')
    S = Stream(a)
    WPOS = opt.get('wpollpos', 2)
    def wpoll():
        poll_masked(a, 219, '0', 'pw')
        stamp(a, opt, 'wpoll')
    if WPOS == 0:
        wpoll(); S.prefetch(opt.get('nA', 8))
    L = 'L_py'
    YL = T0 + 32
    a('s_mov_b32 s34, 0')
    a(f'{L}:')
    for i in range(8):
        a(f's_mov_b32 s33, {YT + 8192*i}')
        a(f'buffer_load_dwordx2 v[{YL+2*i}:{YL+2*i+1}], v{vY}, s[8:11], s33 offen sc1')
    a(f's_add_u32 s34, s34, 1\ns_cmp_gt_u32 s34, {SPIN}\ns_cbranch_scc1 {L}_x')
    a('s_waitcnt vmcnt(0)')
    a(f'v_xor_b32 v{vPL}, s42, v{YL+1}\nv_xor_b32 v{vD0}, s42, v{YL+3}')
    for i in range(2, 8):
        r = vPL if i % 2 == 0 else vD0
        a(f'v_bitop3_b32 v{r}, v{YL+2*i+1}, s42, v{r} bitop3:0xbe')
    a(f'v_or_b32 v{vPL}, v{vPL}, v{vD0}\nv_cmp_ne_u32 vcc, 0, v{vPL}\ns_and_b64 vcc, vcc, s[16:17]\ns_cbranch_scc1 {L}')
    a(f'{L}_x:\ns_waitcnt vmcnt(0)')
    for i in range(8): a(f'v_mov_b32 v{YP+i}, v{YL+2*i}')
    stamp(a, opt, 'y')
    S.win = None
    if WPOS == 1: wpoll()
    if WPOS <= 1: S.prefetch(opt.get('nB', 12))
    unpack_y(a)
    gate_and_norm(a, 1, lambda e: a(f's_add_u32 s33, s18, {14336*e}\nbuffer_store_dwordx4 v[{XO+4*e}:{XO+4*e+3}], v{vXS}, s[8:11], s33 offen'))
    a(f's_mov_b32 s33, {F_X0}\ns_waitcnt vmcnt(0)')
    flag_store(a, vFW, 's33', '')
    stamp(a, opt, 'E0')
    if WPOS == 2: wpoll()
    S.prefetch(opt.get('nC', 7))
    L = 'L_px'
    a(f's_mov_b32 s34, 0\ns_mov_b32 s35, s18\ns_mov_b32 s37, 0')
    a(f'{L}:')
    a(f's_mov_b32 s33, {F_X0}\nbuffer_load_dword v{vPL}, v{vFR}, s[8:11], s33 offen sc1')
    a('s_waitcnt vmcnt(0)')
    a(f'v_cmp_eq_u32 vcc, s23, v{vPL}\nv_and_b32 v{vPL}, -16, v{vPL}\nv_cmp_eq_u32 s[28:29], s42, v{vPL}\ns_cmp_eq_u32 vcc_lo, -1\ns_cbranch_scc1 {L}_x')
    a(f's_add_u32 s34, s34, 1\ns_cmp_eq_u32 s34, 24\ns_cbranch_scc0 {L}_n')
    for e in range(2):
        a(f's_mov_b32 s33, {XNG1 + 14336*e}\nbuffer_store_dwordx4 v[{XO+4*e}:{XO+4*e+3}], v{vXS}, s[8:11], s33 offen sc1')
    a(f's_mov_b32 s33, {F_X0}\ns_waitcnt vmcnt(0)')
    flag_store(a, vFW, 's33', 'sc1', off=128)
    a(f'{L}_n:')
    a(f's_cmp_gt_u32 s34, {SPIN}\ns_cbranch_scc1 {L}_x')
    a(f's_cmp_eq_u32 s29, -1\ns_cbranch_scc0 {L}')
    a(f's_mov_b32 s35, {XNG1}\ns_cmp_eq_u32 vcc_hi, -1\ns_cselect_b32 s37, 0, 1')
    a(f'{L}_x:')
    a.vm_done = a.vm_issued - 1
    stamp(a, opt, 'px0')
    G0 = opt.get('g0', 4)
    S.win = None
    tg = gather_xn(a)
    S.prefetch(opt.get('nD', 14))
    a(f's_lshl_b32 s26, s20, 7\nv_subrev_u32 v{vFW}, s26, v{vFW}\nv_and_b32 v{vFR}, 31, v0\nv_lshl_add_u32 v{vFR}, v{vFR}, 2, s26')
    a.wait(tg[G0 - 1])
    a('s_barrier')
    stamp(a, opt, 'gath0')
    a('s_cmp_eq_u32 s37, 0\ns_cbranch_scc0 L_global')
    snap = a.snapshot(); sst = S.state(); tg0 = tg
    for mode in 'LG':
        if mode == 'G':
            a('L_end:\ns_endpgm\nL_code_end:\nL_global:'); a.restore(snap); S.set_state(sst)
        loc = mode == 'L'
        fm = '' if loc else 'sc1'
        tg = tg0
        for layer in range(2):
            pbase = PB1 if (loc or layer == 0) else PB2
            pmod = (opt.get('p0mod', '') if layer == 0 else '') if loc else 'sc1'
            touch = opt.get(f'touch{layer}', 'none' if layer == 0 else 'sc1').replace('_', ' ').replace('plain', '') if loc else 'none'
            ffn(a, S, opt, layer, tg, pbase, pmod, None if touch == 'none' else touch)
            a(f's_mov_b32 s33, {F_P + 4096*layer}\ns_waitcnt vmcnt(0)')
            stamp(a, opt, f'drain{layer}')
            flag_store(a, vFW, 's33', fm)
            if layer == 0: unpack_y(a)
            poll_masked(a, vFR, 's33', 'pp')
            stamp(a, opt, f'pp{layer}')
            toks = []
            for sidx in range(8):
                a(f's_mov_b32 s33, {pbase + 7168*sidx}')
                for e in range(2):
                    r = T0 + 8 * sidx + 4 * e
                    toks.append(a(f'buffer_load_dwordx4 v[{r}:{r+3}], v{vPR}, s[8:11], s33 offen offset:{256*e} {opt.get(f"pld{layer}", "nt" if layer == 0 else "sc1").replace("_", " ") if loc else "sc1"}'))
            if layer == 0:
                S.win = None
                for p in STR[:NR]: S.issue(1, p)
            for sidx in range(8):
                for e in range(2):
                    r = T0 + 8 * sidx + 4 * e
                    a.wait(toks[2 * sidx + e])
                    for i in range(4):
                        x = X + 8 * (i >> 1) + 4 * e + 2 * (i & 1)
                        a(f'v_dot2_f32_bf16 v{x}, v{r+i}, s40, v{x}\nv_dot2_f32_bf16 v{x+1}, v{r+i}, s41, v{x+1}')
            if layer == 1: break
            stamp(a, opt, 'red0')
            stats(a, 2)
            norm_to(a, Z)
            xn2 = 's18' if loc else XNG2
            a(f's_mov_b32 s35, {xn2}')
            gate_and_norm(a, 3, lambda e: a(f's_add_u32 s33, s35, {14336*e}\nbuffer_store_dwordx4 v[{XO+4*e}:{XO+4*e+3}], v{vXS}, s[8:11], s33 offen {fm}'))
            a(f's_mov_b32 s33, {F_X1}\ns_waitcnt vmcnt(0)')
            flag_store(a, vFW, 's33', fm)
            stamp(a, opt, 'E1')
            poll_masked(a, vFR, 's33', 'px')
            stamp(a, opt, 'px1')
            tg = gather_xn(a)
            a.wait(tg[G0 - 1])
            a('s_barrier')
            stamp(a, opt, 'gath1')
        for e in range(2):
            for p in range(4):
                a(f'v_cvt_pk_bf16_f32 v{XO+4*e+p}, v{X+8*e+2*p}, v{X+8*e+2*p+1}')
            a(f'buffer_store_dwordx4 v[{XO+4*e}:{XO+4*e+3}], v{vQ}, s[52:55], 0 offen offset:{896*e}')
        a(f's_add_u32 s43, s43, 1\nv_mov_b32 v{vD0}, s43\ns_cmp_eq_u32 s2, 0\ns_cselect_b32 s26, 0, {OOB}\ns_mov_b64 exec, 1')
        a(f'buffer_store_dword v{vD0}, off, s[8:11], s26\ns_mov_b64 exec, -1')
        stamp(a, opt, 'end')
        dump_stamps(a, opt)
    a('s_endpgm')


def build(opt):
    a = Asm()
    gen(a, opt)
    s = HDR + f'; @launch grid=(256,1,1) block=(256,1,1) lds={LDS_BYTES}\n'
    if opt.get('stamps'): s += '; STAMPS k:' + ','.join(STN) + '\n'
    s += '.amdgcn_target "amdgcn-amd-amdhsa--gfx950"\n' + a.finalize()
    s += kernel_desc(NAME + '_kernel', 512, 102, accum=256)
    return s


if __name__ == '__main__':
    opt = {}
    for x in sys.argv[2:]:
        k, v = x.split('=')
        opt[k] = int(v) if v.lstrip('-').isdigit() else v
    open(sys.argv[1], 'w').write(build(opt))
```

```python
import sys, struct
from asmgen import *

NAME = 'interleave_layers__ssm_conv_h3__glu_gated_bilinear__prompt'
HDR = open('cdna_kernels/' + NAME + '.s.ref').read().split('; Override launch')[0]

EPOCH = 0
FU_L = 0x1000
FU_G = 0x2000
F_W = 0x3000
F_X0 = 0x5000
F_P = 0x7000
F_X1 = 0x9000
UR = 0x40000
XNL = 0x200000
YT = 0x3C0000
WW = 0x740000
URG = 0xBE0000
XNG1 = 0xDA0000
XNG2 = 0xF60000
PB1 = 0x1200000
PB2 = 0x2080000
STAMP = 0x2F00000
WS_BYTES = 0x3000000
OOB = 0x80000000
XBYTES = 2048 * 448 * 2
GROUPS = [(0, 1, 2), (3, 4), (5, 6)]
SPIN = 0x100000
f2u = lambda f: struct.unpack('<I', struct.pack('<f', f))[0]


def g2pos(j, step):
    base = 0
    for g in GROUPS:
        if j in g:
            return base + step * len(g) + (j - g[0])
        base += 7 * len(g)


STN = []
SSET = {'front': 'start kv ust uflag upoll cstart mma yst wpoll y E0 px0 gath0 end'.split(),
        'early': 'start ka kvi early kv kv2 ust uflag upoll hcp cstart mma yst wpoll y E0 px0 gath0 end'.split(),
        'all': 'start kv2 cstart yst y E0 gath0 g1_0 g2_0 pp0 red0 gath1 g1_1 g2_1 pp1 end'.split(),
        'back': 'start gath0 g1_0 g2_0 drain0 pp0 red0 E1 px1 gath1 g1_1 g2_1 drain1 pp1 end'.split()}


def stamp(a, opt, n):
    if opt.get('stamps') and n in SSET[opt.get('sset', 'front')]:
        if n not in STN: STN.append(n)
        i = STN.index(n)
        assert i < 21
        a(f'{"s_memtime" if opt["stamps"] == 2 else "s_memrealtime"} s[{60+2*i}:{61+2*i}]')


def dump_stamps(a, opt):
    if not opt.get('stamps'):
        return
    a('s_waitcnt lgkmcnt(0) vmcnt(0)')
    if opt.get('dbg') is not None:
        a(f's_load_dwordx2 s[4:5], s[0:1], 88\ns_mov_b32 s6, 256\ns_lshl_b32 s26, s2, 2\ns_add_u32 s26, s26, s22\ns_cmp_eq_u32 s26, {opt["dbg"]}\ns_cselect_b32 s26, 0, {OOB}\ns_waitcnt lgkmcnt(0)')
        a('s_mov_b64 exec, 1')
        for i in range(1, min(17, len(STN))):
            a(f's_sub_u32 s3, s{60+2*i}, s60\nv_mov_b32 v2, s3\nbuffer_store_dword v2, off, s[4:7], s26 offset:{4*(i-1)}')
        a('s_mov_b64 exec, -1')
        return
    a(f's_lshl_b32 s26, s2, 2\ns_add_u32 s26, s26, s22\ns_lshl_b32 s26, s26, 7\ns_add_u32 s26, s26, {STAMP}')
    a('v_mov_b32 v1, 0\ns_mov_b64 exec, 1')
    for i in range(len(STN)):
        a(f'v_mov_b32 v2, s{60+2*i}\nbuffer_store_dword v2, v1, s[8:11], s26 offen offset:{4*i}')
    a('s_mov_b64 exec, -1')


L_XN = 0; L_H = 57344; L_ST = 125952
DELTA = [12, 0, 1, 4, 5, 8, 9, 12]
KC_UP = 4608; KC_H = 9216; KC_HP = 35328
KC_Y = KC_H + 2 * KC_HP
L_UB = 96256
L_WS = 105472
L_LOC = 125440
LDS_BYTES = L_ST + 1024
W1P = 928

X = 16; YP = 32
vXR, vHB, vH1, vHa, vHb, vHc, vP, vPR, vXS, vQ, vW, vFW, vFR, vST, vSR = 1, 2, 3, 6, 7, 8, 9, 10, 11, 12, 13, 14, 15, 40, 41
vPL, vTAG, vEPS, vXG, vD0, vD1 = 42, 43, 44, 45, 46, 47
ACC = 48; RING = 160; NR = 14; XF = 224; HOWN = XF + 16
vY = 216; vTP = 217; vTQ = 218
T0 = ACC


def resident_set():
    res = [7 * k + j for k in range(14) for j in range(2)] + [98 + i for i in range(14, 49)]
    assert len(res) == 63
    return res


RES = resident_set()
STR = [p for p in range(147) if p not in RES]


class Stream:
    def __init__(self, a):
        self.a = a; self.tok = {}; self.win = None

    @staticmethod
    def reg(p):
        if p in RES:
            i = RES.index(p)
            return f'a[{4*i}:{4*i+3}]'
        n = STR.index(p) % NR
        return f'v[{RING + 4*n}:{RING + 4*n + 3}]'

    def issue(self, layer, p):
        w = p >> 2
        if w != self.win:
            self.a(f's_mov_b32 s31, {WW + w*4096}'); self.win = w
        self.tok[(layer, p)] = self.a(f'buffer_load_dwordx4 {self.reg(p)}, v{vW}, s[8:11], s31 offen offset:{(p & 3)*1024}')

    def prefetch(self, k):
        todo = sorted(p for p in set(STR[:NR] + RES) if (0, p) not in self.tok)
        for p in todo[:k]: self.issue(0, p)

    def refill(self, layer, p):
        n = STR.index(p) + NR
        if n < len(STR): self.issue(layer, STR[n])

    def wait(self, layer, p):
        self.a.wait(self.tok[(0 if p in RES else layer, p)])

    def state(self): return (dict(self.tok), None)

    def set_state(self, st): self.tok, self.win = dict(st[0]), None


def flag_store(a, vaddr, soff, mod, srd_='s[8:11]', off=0):
    a(f's_mov_b64 exec, 1\nbuffer_store_dword v{vTAG}, v{vaddr}, {srd_}, {soff} offen offset:{off} {mod}\ns_mov_b64 exec, -1')


def poll_masked(a, vaddr, soff, name):
    L = a.label(name)
    a('s_mov_b32 s34, 0')
    a(f'{L}:')
    a(f'buffer_load_dword v{vPL}, v{vaddr}, s[8:11], {soff} offen sc1')
    a(f's_add_u32 s34, s34, 1\ns_cmp_gt_u32 s34, {SPIN}\ns_cbranch_scc1 {L}_x')
    a(f's_waitcnt vmcnt(0)\nv_and_b32 v{vPL}, -16, v{vPL}')
    a(f'v_cmp_ne_u32 vcc, s42, v{vPL}\ns_cbranch_vccnz {L}')
    a(f'{L}_x:\ns_waitcnt vmcnt(0)')


def stats(a, rnd):
    t = T0 + 8
    for e in range(2):
        x = X + 8 * e; s = t + 4 * e
        a(f'v_pk_add_f32 v[{s}:{s+1}], v[{x}:{x+1}], v[{x+2}:{x+3}]')
        a(f'v_pk_mul_f32 v[{s+2}:{s+3}], v[{x}:{x+1}], v[{x}:{x+1}]')
        a(f'v_pk_add_f32 v[{s}:{s+1}], v[{s}:{s+1}], v[{x+4}:{x+5}]')
        a(f'v_pk_fma_f32 v[{s+2}:{s+3}], v[{x+2}:{x+3}], v[{x+2}:{x+3}], v[{s+2}:{s+3}]')
        a(f'v_pk_add_f32 v[{s}:{s+1}], v[{s}:{s+1}], v[{x+6}:{x+7}]')
        a(f'v_pk_fma_f32 v[{s+2}:{s+3}], v[{x+4}:{x+5}], v[{x+4}:{x+5}], v[{s+2}:{s+3}]')
        a(f'v_add_f32 v{s}, v{s}, v{s+1}')
        a(f'v_pk_fma_f32 v[{s+2}:{s+3}], v[{x+6}:{x+7}], v[{x+6}:{x+7}], v[{s+2}:{s+3}]')
    a(f'v_add_f32 v{t+2}, v{t+2}, v{t+3}\nv_add_f32 v{t+6}, v{t+6}, v{t+7}')
    S0, Q0, S1, Q1 = t, t + 2, t + 4, t + 6
    a(f'v_permlane32_swap_b32 v{S0}, v{S1}\nv_permlane32_swap_b32 v{Q0}, v{Q1}')
    a(f'v_add_f32 v{S0}, v{S0}, v{S1}\nv_add_f32 v{Q0}, v{Q0}, v{Q1}')
    a(f'v_permlane16_swap_b32 v{S0}, v{Q0}')
    a(f'v_add_f32 v{S0}, v{S0}, v{Q0}')
    a(f'v_add_f32_dpp v{S0}, v{S0}, v{S0} row_ror:4 row_mask:0xf bank_mask:0xf')
    a(f'v_add_f32_dpp v{S0}, v{S0}, v{S0} row_ror:8 row_mask:0xf bank_mask:0xf')
    a(f'ds_write_b32 v{vST}, v{S0} offset:{256*rnd}')
    a('s_waitcnt lgkmcnt(0)\ns_barrier')
    tk = [a(f'ds_read_b128 v[{t+4*i}:{t+4*i+3}], v{vSR} offset:{256*rnd + 16*i}') for i in range(4)]
    for e in range(2):
        s = t + 8 * e; q = s + 4
        a.wait(tk[2 * e + 1])
        a(f'v_pk_add_f32 v[{s}:{s+1}], v[{s}:{s+1}], v[{s+2}:{s+3}]\nv_pk_add_f32 v[{q}:{q+1}], v[{q}:{q+1}], v[{q+2}:{q+3}]')
        a(f'v_add_f32 v{s}, v{s}, v{s+1}\nv_add_f32 v{q}, v{q}, v{q+1}')
        a(f'v_mul_f32 v{s}, s36, v{s}\nv_fma_f32 v{q}, v{q}, s36, v{vEPS}')
        a(f'v_fma_f32 v{q}, -v{s}, v{s}, v{q}\nv_max_f32 v{q}, v{q}, v{vEPS}\nv_rsq_f32 v{T0+4*e}, v{q}')
        a(f'v_mul_f32_e64 v{T0+4*e+2}, -v{s}, v{T0+4*e}')


YF = T0 + 64; Z = T0 + 80; XO = T0 + 96


def norm_to(a, dst):
    for e in range(2):
        for p in range(4):
            x = X + 8 * e + 2 * p; z = dst + 8 * e + 2 * p
            a(f'v_pk_fma_f32 v[{z}:{z+1}], v[{x}:{x+1}], v[{T0+4*e}:{T0+4*e+1}], v[{T0+4*e+2}:{T0+4*e+3}] op_sel_hi:[1,0,0]')


def unpack_y(a):
    for i in range(8):
        a(f'v_lshlrev_b32 v{YF+i}, 16, v{YP+i}\nv_and_b32 v{YF+8+i}, 0xffff0000, v{YP+i}')


def gate_and_norm(a, rnd, store):
    for p in range(8):
        x = X + 2 * p
        a(f'v_pk_fma_f32 v[{x}:{x+1}], v[{Z+2*p}:{Z+2*p+1}], v[{YF+2*p}:{YF+2*p+1}], v[{x}:{x+1}]')
    stats(a, rnd)
    norm_to(a, Z)
    for e in range(2):
        for p in range(4):
            a(f'v_cvt_pk_bf16_f32 v{XO+4*e+p}, v{Z+8*e+2*p}, v{Z+8*e+2*p+1}')
        store(e)


def gather_xn(a):
    a(f's_mul_i32 s33, s22, 14336\ns_add_u32 s34, s33, s35')
    toks = []
    for i in range(14):
        a('s_mov_b32 m0, s33\ns_add_u32 s33, s33, 1024')
        toks.append(a(f'buffer_load_dwordx4 v{vXG}, s[8:11], s34 offen sc1 lds\ns_add_u32 s34, s34, 1024'))
    return toks


def ffn(a, S, opt, layer, tg, pbase, pmod, touch):
    acc1 = lambda j, mt: ACC + 4 * (mt * 7 + j)
    acc2 = lambda j, mt: ACC + 4 * (j * 4 + mt)
    xr = lambda buf, mt: XF + 16 * buf + 4 * mt
    wwait = lambda p: S.wait(layer, p)
    a(f's_mov_b32 s38, {pbase}\ns_mov_b32 s39, {pbase + 4*57344}')
    xt = {}
    def xload(k, mt):
        xt[(k, mt)] = a(f'ds_read_b128 v[{xr(k & 1, mt)}:{xr(k & 1, mt)+3}], v{vXR} offset:{(mt*14 + k)*1024}')
    for mt in range(4): xload(0, mt)
    def conv_h(mt):
        ops = []
        for j in range(7):
            d = acc1(j, mt)
            dst = (HOWN + 4 * mt + j) if j < 4 else (acc1(4, mt) + (j - 4))
            ops.append(f'v_pk_mul_f32 v[{d}:{d+1}], v[{d}:{d+1}], v[{d+2}:{d+3}]')
            ops.append(f'v_cvt_pk_bf16_f32 v{dst}, v{d}, v{d+1}')
        h = HOWN + 4 * mt; o = acc1(4, mt)
        ops.insert(8, f'ds_write_b128 v{vHa}, v[{h}:{h+3}] offset:{7168*mt}')
        ops.append(f'ds_write_b64 v{vHb}, v[{o}:{o+1}] offset:{7168*mt}')
        ops.append(f'ds_write_b32 v{vHc}, v{o+2} offset:{7168*mt}')
        return ops
    G0 = opt.get('g0', 4)
    for k in range(14):
        last = k == 13
        order = [(j, mt) for j in range(7) for mt in range(4)] if not last else [(j, mt) for mt in range(4) for j in range(7)]
        fill = []
        for n, (j, mt) in enumerate(order):
            p = 7 * k + j
            wwait(p); a.wait(xt[(k, mt)])
            d = acc1(j, mt)
            c = '0' if k == 0 else f'v[{d}:{d+3}]'
            a(f'v_mfma_f32_16x16x32_bf16 v[{d}:{d+3}], {S.reg(p)}, v[{xr(k & 1, mt)}:{xr(k & 1, mt)+3}], {c}')
            if k == G0 - 1 and n == 3:
                a.wait(tg[-1]); a('s_barrier')
            if layer == 0 and mt == 1 and j < opt.get('rps', 3): S.prefetch(1)
            if not last:
                if 4 <= n < 8: xload(k + 1, n - 4)
            else:
                if mt >= 1 and j == 2: fill += conv_h(mt - 1)
                for _ in range(3):
                    if fill: a(fill.pop(0))
            if mt == 3 and p in STR: S.refill(layer, p)
        for f in fill: a(f)
    stamp(a, opt, f'g1_{layer}')
    if layer == 0 and touch is not None: S.prefetch(99)
    if touch is not None:
        a(f'buffer_load_dword v{vD0}, v{vTP}, s[8:11], s38 offen {touch}\nbuffer_load_dword v{vD1}, v{vTQ}, s[8:11], s38 offen {touch}')
    pend = conv_h(3)
    ht = {}
    hreg = lambda n, mt: XF + 16 * ((n + 1) & 1) + 4 * mt
    def hload(n, mt):
        st = n % 7
        addr, off = (vHa if st == 0 else vH1 + st - 1, 7168 * mt) if st < 4 else (vHB, 7168 * mt + 1024 * st)
        ht[(n, mt)] = a(f'ds_read_b128 v[{hreg(n, mt)}:{hreg(n, mt)+3}], v{addr} offset:{off}')
    for gi, g in enumerate(GROUPS):
        for step in range(7):
            ng = 7 * gi + step
            order = [(j, mt) for mt in range(4) for j in g] if ng == 0 else [(j, mt) for j in g for mt in range(4)]
            for n, (j, mt) in enumerate(order):
                pp = 98 + g2pos(j, step)
                wwait(pp)
                if ng > 0: a.wait(ht[(ng, mt)])
                d = acc2(j, mt)
                c = '0' if step == 0 else f'v[{d}:{d+3}]'
                a(f'v_mfma_f32_16x16x32_bf16 v[{d}:{d+3}], {S.reg(pp)}, v[{hreg(ng, mt)}:{hreg(ng, mt)+3}], {c}')
                if ng == 0:
                    for _ in range(2):
                        if pend: a(pend.pop(0))
                    if n == 8:
                        assert not pend
                        a('s_waitcnt lgkmcnt(0)\ns_barrier')
                        hload(1, 0); hload(1, 1)
                    if n in (9, 10): hload(1, n - 7)
                elif ng < 20 and 2 <= n < 6: hload(ng + 1, n - 2)
                if mt == 3 and pp in STR: S.refill(layer, pp)
                if layer == 0 and mt == 1: S.prefetch(1)
                if step >= 1:
                    for _ in range(2):
                        if pend: a(pend.pop(0))
        assert not pend
        for j in g:
            for aa in range(2):
                d = acc2(j, 2 * aa)
                for i in range(4):
                    pend.append(f'v_cvt_pk_bf16_f32 v{d+i}, v{d+2*i}, v{d+2*i+1}')
                pend.append(f'buffer_store_dwordx4 v[{d}:{d+3}], v{vP}, s[8:11], s{38+aa} offen offset:{256*j} {pmod}')
    stamp(a, opt, f'g2_{layer}')
    for f in pend: a(f)


def conv_phase(a, opt, which, post_barrier):
    vA, vB, vC3, vL15, vL4, vLN = 192, 193, 194, 195, 196, 197
    A0, B0, CA = 64, 128, 48
    for half, qs in (((0, (7, 4, 3, 0)), (1, (6, 5, 2, 1)))[which],):
        qmax = qs[0]
        order = list(range(8))
        def loads(it):
            g0 = order[it]; buf = it & 1
            seq = []
            for i in range(qmax + 1):
                seq += [('A', i), ('B', qmax - i)]
            return [(k, i, (f'ds_read_b128 v[{A0+32*buf+4*i}:{A0+32*buf+4*i+3}], v{vA} offset:{512*i + 64*g0}' if k == 'A' else
                            f'ds_read_b128 v[{B0+32*buf+4*i}:{B0+32*buf+4*i+3}], v{vB} offset:{512*(7-i) + 64*g0}')) for k, i in seq]
        toks = {}
        for k, i, txt in loads(0):
            toks[(0, k, i)] = a(txt)
        for it in range(8):
            buf = it & 1
            nxt = loads(it + 1) if it < 7 else []
            if post_barrier: post_barrier(it)
            pairs = [(q, g1) for g1 in range(qmax + 1) for q in qs if q >= g1]
            for n, (q, g1) in enumerate(pairs):
                m = q - g1
                a.wait(toks[(it, 'A', g1)], toks[(it, 'B', m)])
                acc = CA + 4 * qs.index(q)
                c = '0' if (it == 0 and g1 == 0) else f'v[{acc}:{acc+3}]'
                a(f'v_mfma_f32_16x16x32_bf16 v[{acc}:{acc+3}], v[{A0+32*buf+4*g1}:{A0+32*buf+4*g1+3}], v[{B0+32*buf+4*m}:{B0+32*buf+4*m+3}], {c}')
                if nxt:
                    k, i, txt = nxt.pop(0)
                    toks[(it + 1, k, i)] = a(txt)
            assert not nxt
        stamp(a, opt, 'mma')
        a(f'v_lshlrev_b32 v198, 5, v{vL15}\nv_lshl_add_u32 v198, v{vL4}, 3, v198')
        a(f's_add_u32 s26, s28, {4088 - 3584}\nv_sub_u32 v199, s26, v198')
        tu = [a(f'ds_read_b64 v[{64+2*i}:{65+2*i}], v199 offset:{512*(7-q)}') for i, q in enumerate(qs)]
        a(f's_lshl_b32 s26, s22, 12\ns_add_u32 s26, s26, {KC_Y}\nv_lshl_add_u32 v198, v198, 1, s26\nv_add_u32 v199, s26, v{vXR}')
        for i, q in enumerate(qs):
            acc = CA + 4 * i
            a.wait(tu[i])
            lo, hi = 64 + 2 * i, 65 + 2 * i
            a(f'v_and_b32 v72, 0xffff0000, v{hi}\nv_lshlrev_b32 v73, 16, v{hi}\nv_and_b32 v74, 0xffff0000, v{lo}\nv_lshlrev_b32 v75, 16, v{lo}')
            for r in range(4):
                a(f'v_fmac_f32 v{acc+r}, s58, v{72+r}')
            a(f'v_cvt_pk_bf16_f32 v{acc}, v{acc}, v{acc+1}\nv_cvt_pk_bf16_f32 v{acc+2}, v{acc+2}, v{acc+3}')
            a(f'v_mov_b32 v{acc+1}, s42\nv_mov_b32 v{acc+3}, s42')
            a(f'ds_write_b128 v198, v[{acc}:{acc+3}] offset:{1024*i}')
        a('s_waitcnt lgkmcnt(0)')
        ty = [a(f'ds_read_b128 v[{64+4*i}:{67+4*i}], v199 offset:{1024*i}') for i in range(4)]
        a(f's_lshl_b32 s26, s30, 1\ns_add_u32 s26, s26, {YT}')
        for i, q in enumerate(qs):
            a(f's_add_u32 s3, s26, {1024*q}')
            a.wait(ty[i]); a(f'buffer_store_dwordx4 v[{64+4*i}:{67+4*i}], v{vXR}, s[8:11], s3 offen sc1')


def ffn_addresses(a):
    t2, q, mm, kap, oob, row, t = 204, 205, 206, 207, 208, 209, 210
    a(f'v_lshrrev_b32 v{t2}, 4, v0\nv_bfe_u32 v{q}, v0, 2, 2\nv_and_b32 v{mm}, 3, v0')
    a(f's_lshl_b32 s26, s22, 2\nv_add_u32 v{kap}, s26, v{t2}\nv_cmp_gt_u32 vcc, 14, v{kap}\nv_mov_b32 v{oob}, {OOB}')
    a('s_lshl_b32 s26, s20, 6\ns_lshl_b32 s3, s21, 3\ns_add_u32 s26, s26, s3')
    a(f'v_lshl_add_u32 v{row}, v{mm}, 1, s26\nv_mul_u32_u24 v{t}, 896, v{row}\nv_lshl_add_u32 v{t}, v{kap}, 6, v{t}\nv_lshl_add_u32 v{t}, v{q}, 4, v{t}')
    a(f'v_cndmask_b32 v{vQ}, v{oob}, v{t}, vcc\ns_mov_b64 s[16:17], vcc')
    a(f'v_lshlrev_b32 v{t}, 18, v{kap}\nv_lshl_add_u32 v{t}, v{q}, 16, v{t}\nv_lshl_add_u32 v{t}, v{row}, 2, v{t}\nv_cndmask_b32 v{vY}, v{oob}, v{t}, vcc')
    a('s_mul_i32 s33, s20, 57344\ns_lshr_b32 s26, s21, 2\ns_mul_i32 s26, s26, 28672\ns_add_u32 s26, s26, s33\ns_and_b32 s3, s21, 3\ns_lshl_b32 s3, s3, 6\ns_add_u32 s26, s26, s3')
    a(f'v_lshlrev_b32 v{t}, 10, v{kap}\nv_lshl_add_u32 v{t}, v{q}, 8, v{t}\nv_lshl_add_u32 v{t}, v{mm}, 4, v{t}\nv_add_u32 v{t}, s26, v{t}\nv_cndmask_b32 v{vXS}, v{oob}, v{t}, vcc')
    a(f'v_add_u32 v{vXG}, s33, v{vXR}')
    a(f's_mul_i32 s33, s20, 458752\ns_mul_i32 s26, s21, 57344\ns_add_u32 s26, s26, s33\nv_and_b32 v{t}, 15, v0\nv_lshlrev_b32 v{t}, 4, v{t}\nv_lshl_add_u32 v{t}, v{kap}, 9, v{t}\nv_add_u32 v{t}, s26, v{t}\nv_cndmask_b32 v{vPR}, v{oob}, v{t}, vcc')
    a(f's_mul_i32 s3, s22, 14336\ns_add_u32 s26, s26, s3\nv_lshl_add_u32 v{vTP}, v0, 7, s26\nv_min_u32 v{vTQ}, 47, v0\ns_add_u32 s26, s26, 8192\nv_lshl_add_u32 v{vTQ}, v{vTQ}, 7, s26')
    a(f's_mul_i32 s26, s21, 7168\ns_add_u32 s26, s26, s33\ns_mul_i32 s3, s22, 1792\ns_add_u32 s26, s26, s3')
    a(f'v_mul_u32_u24 v{t}, 57344, v{q}\nv_lshl_add_u32 v{t}, v{t2}, 6, v{t}\nv_lshl_add_u32 v{t}, v{mm}, 4, v{t}\nv_add_u32 v{vP}, s26, v{t}')
    a(f's_lshl_b32 s26, s21, 2\ns_add_u32 s26, s26, s22\ns_mul_i32 s26, s26, 150528\nv_add_u32 v{vW}, s26, v{vXR}')
    a(f'v_add_u32 v{vHB}, {L_H}, v{vXR}')
    for st in range(1, 4):
        a(f's_xor_b32 s26, s22, {st}\ns_lshl_b32 s26, s26, 10\nv_add_u32 v{vH1+st-1}, s26, v{vHB}')
    a(f's_lshl_b32 s26, s22, 10\nv_add_u32 v{vHa}, s26, v{vHB}')
    a(f's_lshr_b32 s26, s22, 1\ns_lshl_b32 s26, s26, 10\ns_and_b32 s3, s22, 1\ns_lshl_b32 s3, s3, 3\ns_add_u32 s26, s26, s3\ns_add_u32 s26, s26, 4096\nv_add_u32 v{vHb}, s26, v{vHB}')
    a(f's_lshl_b32 s26, s22, 2\ns_add_u32 s26, s26, 6144\nv_add_u32 v{vHc}, s26, v{vHB}')
    a(f's_lshl_b32 s26, s22, 2\ns_add_u32 s26, s26, {L_ST}\nv_lshlrev_b32 v{t}, 6, v{mm}\nv_lshl_add_u32 v{vST}, v{t2}, 4, v{t}\nv_add_u32 v{vST}, s26, v{vST}\nv_add_u32 v{vSR}, {L_ST}, v{t}')
    a(f'v_mov_b32 v{vEPS}, {f2u(1e-5)}\ns_mov_b32 s36, {f2u(1/448.)}\ns_mov_b32 s40, 0x3f80\ns_mov_b32 s41, 0x3f800000')


def q_and_touch(a, touch):
    a(f's_mov_b32 s4, s56\ns_mov_b32 s5, s57\ns_mov_b32 s6, {XBYTES}')
    tq = [a(f'buffer_load_dwordx4 v[{YP+4*e}:{YP+4*e+3}], v{vQ}, s[4:7], 0 offen offset:{896*e} nt') for e in range(2)]
    for e in range(2 if touch else 0):
        a(f's_mov_b32 s33, {XNL + 14336*e}\nbuffer_load_dword v{vD0}, v{vXS}, s[8:11], s33 offen sc1')
    return tq


def flag_touch(a):
    a(f's_lshl_b32 s26, s20, 8\ns_add_u32 s26, s26, {F_X0}\nv_mov_b32 v211, s26')
    for i, (base, sh) in enumerate(((F_P, 7), (F_P + 4096, 7), (F_X1, 7))):
        a(f's_lshl_b32 s26, s20, {sh}\ns_add_u32 s26, s26, {base}\nv_writelane_b32 v211, s26, {1+i}')
    a(f's_lshl_b32 s26, s24, 8\ns_add_u32 s26, s26, {FU_L}')
    for i in range(2):
        a(f'v_writelane_b32 v211, s26, {4+i}\ns_add_u32 s26, s26, 128')
    a(f'buffer_load_dword v{vD0}, v211, s[8:11], 0 offen sc1')


def code_prefetch(a):
    a('s_getpc_b64 s[4:5]\nL_pc:\ns_sub_u32 s4, s4, L_pc-' + NAME + '_kernel\ns_subb_u32 s5, s5, 0\ns_mov_b32 s6, L_code_end-' + NAME + '_kernel')
    a('s_lshl_b32 s26, s25, 11\ns_and_b32 s3, s22, 1\ns_lshl_b32 s3, s3, 10\ns_add_u32 s26, s26, s3\nv_and_b32 v212, 7, v0\nv_lshl_add_u32 v212, v212, 7, s26')
    a(f'buffer_load_dword v{vD0}, v212, s[4:7], 0 offen')


def make_tag(a):
    a(f's_mul_i32 s42, s43, 0x9E3779B1\ns_add_u32 s42, s42, 0x7F4A7C15\ns_and_b32 s42, s42, -16\ns_or_b32 s23, s23, s42\nv_mov_b32 v{vTAG}, s23')


def gen(a, opt):
    NT = opt.get('nt', 'nt') if opt.get('nt', 'nt') != 'none' else ''
    kernel_begin(a, NAME + '_kernel')
    a('s_cmp_ge_u32 s2, 256\ns_cbranch_scc1 L_end')
    stamp(a, opt, 'start')
    a('s_load_dwordx8 s[28:35], s[0:1], 8')
    a('s_load_dwordx2 s[8:9], s[0:1], 96')
    a('s_load_dwordx2 s[56:57], s[0:1], 0')
    a('s_load_dwordx2 s[38:39], s[0:1], 40')
    a('s_load_dwordx4 s[44:47], s[0:1], 56')
    a('s_load_dwordx4 s[52:55], s[0:1], 72')
    a('s_getreg_b32 s23, hwreg(HW_REG_XCC_ID, 0, 4)\ns_add_u32 s23, s23, 1')
    a(f'v_lshrrev_b32 v48, 6, v0\nv_mov_b32 v49, v0\nv_and_b32 v0, 63, v0\nv_readfirstlane_b32 s22, v48\nv_lshlrev_b32 v{vXR}, 4, v0')
    a('s_and_b32 s24, s2, 7\ns_lshr_b32 s25, s2, 3')
    a('s_lshl_b32 s20, s24, 2\ns_lshr_b32 s21, s2, 6\ns_add_u32 s20, s20, s21\ns_and_b32 s21, s25, 7')
    a(f's_mov_b32 s10, {WS_BYTES}\ns_mov_b32 s11, 0x20000\ns_mov_b32 s7, 0x20000\ns_mov_b32 s15, 0x20000\ns_mov_b32 s19, 0x20000')
    a('s_cmp_eq_u32 s24, 7\ns_cbranch_scc1 L_spare')
    a('v_and_b32 v50, 31, v0\nv_lshrrev_b32 v51, 5, v49')
    a('s_lshl_b32 s26, s25, 6\nv_lshl_add_u32 v52, v51, 3, s26')
    a('s_lshl_b32 s26, s24, 7\nv_lshl_add_u32 v53, v50, 2, s26')
    a('v_mul_u32_u24 v54, 896, v52\nv_add_u32 v54, v54, v53')
    a(f'v_subrev_u32 v55, 2688, v54\nv_mov_b32 v56, {OOB}\nv_cmp_eq_u32 vcc, 0, v52\nv_lshlrev_b32 v57, 2, v53\nv_cndmask_b32 v55, v55, v56, vcc')
    a('s_movk_i32 s26, 4480')
    a(f's_mov_b32 s14, {XBYTES}\ns_mov_b32 s18, {XBYTES}\ns_movk_i32 s6, 3584')
    a('s_waitcnt lgkmcnt(0)')
    stamp(a, opt, 'ka')
    a('s_mov_b32 s12, s28\ns_mov_b32 s13, s29\ns_mov_b32 s16, s30\ns_mov_b32 s17, s31\ns_mov_b32 s4, s32\ns_mov_b32 s5, s33')
    K0, V0, SH = 64, 76, 60
    tk = []
    for j in range(3):
        tk.append(a(f'buffer_load_dword v{K0+j}, v55, s[12:15], 0 offen offset:{896*j} {NT}'))
    for j in range(8):
        so, off = ('0', 896 * j) if j < 5 else ('s26', 896 * (j - 5))
        tk.append(a(f'buffer_load_dword v{K0+3+j}, v54, s[12:15], {so} offen offset:{off} {NT}'))
    tw = a(f'buffer_load_dwordx4 v[{SH}:{SH+3}], v57, s[4:7], 0 offen')
    tv = []
    for j in range(8):
        so, off = ('0', 896 * j) if j < 5 else ('s26', 896 * (j - 5))
        tv.append(a(f'buffer_load_dword v{V0+j}, v54, s[16:19], {so} offen offset:{off} {NT}'))
    stamp(a, opt, 'kvi')
    a('s_load_dword s43, s[8:9], 0x0')
    a('s_lshl_b32 s26, s24, 5\ns_add_u32 s26, s26, s25\ns_lshl_b32 s26, s26, 2\ns_load_dword s58, s[38:39], s26')
    a('s_and_b32 s51, s22, 1\ns_lshr_b32 s27, s22, 1')
    a('s_lshl_b32 s30, s24, 5\ns_add_u32 s30, s30, s25\ns_lshl_b32 s30, s30, 1\ns_add_u32 s30, s30, s51\ns_lshl_b32 s30, s30, 12')
    a(f's_mul_i32 s28, s51, {KC_UP}\ns_mul_i32 s29, s51, {KC_HP}\ns_add_u32 s29, s29, {KC_H + 256}')
    a(f's_lshl_b32 s37, s24, 18\ns_lshl_b32 s3, s25, 7\ns_sub_u32 s37, s37, s3\ns_add_u32 s37, s37, {4096 - 128}\ns_lshl_b32 s3, s51, 17\ns_add_u32 s37, s37, s3')
    vA, vB, vC3, vL15, vL4 = 192, 193, 194, 195, 196

    def kv_compute():
        WT, KF, VF, UF = 88, 96, 118, 120
        a.wait(tw)
        stamp(a, opt, 'kv')
        for tau in range(4):
            for c in range(2):
                src = SH + 2 * c + (tau >> 1)
                a(f'v_lshlrev_b32 v{WT+2*tau+c}, 16, v{src}' if tau % 2 == 0 else f'v_and_b32 v{WT+2*tau+c}, 0xffff0000, v{src}')
        for j in range(11):
            a(f'v_lshlrev_b32 v{KF+2*j}, 16, v{K0+j}\nv_and_b32 v{KF+2*j+1}, 0xffff0000, v{K0+j}')
        for j in range(8):
            u = UF + 2 * j
            a(f'v_pk_mul_f32 v[{u}:{u+1}], v[{KF+2*(j+3)}:{KF+2*(j+3)+1}], v[{WT}:{WT+1}]')
            for tau in range(1, 4):
                a(f'v_pk_fma_f32 v[{u}:{u+1}], v[{KF+2*(j+3-tau)}:{KF+2*(j+3-tau)+1}], v[{WT+2*tau}:{WT+2*tau+1}], v[{u}:{u+1}]')
        for j in range(8):
            u = UF + 2 * j
            a.wait(tv[j])
            a(f'v_lshlrev_b32 v{VF}, 16, v{V0+j}\nv_and_b32 v{VF+1}, 0xffff0000, v{V0+j}')
            a(f'v_pk_mul_f32 v[{u}:{u+1}], v[{u}:{u+1}], v[{VF}:{VF+1}]')
        for c in range(2):
            for n in range(4):
                a(f'v_cvt_pk_bf16_f32 v{64+4*c+n}, v{UF+2*(7-2*n)+c}, v{UF+2*(6-2*n)+c}')
        a('ds_write_b128 v59, v[64:67]\nds_write_b128 v59, v[68:71] offset:144')
        a('s_waitcnt lgkmcnt(0)\ns_barrier')
        stamp(a, opt, 'kv2')

    def conv_addresses():
        def copybase(dst, c):
            a(f's_mov_b32 s26, {sum(DELTA[i] << (4*i) for i in range(8))}\nv_lshlrev_b32 v199, 2, v{c}\nv_lshrrev_b32 v199, v199, s26\nv_and_b32 v199, 15, v199')
            a(f'v_mul_u32_u24 v{dst}, 4352, v{c}\nv_lshl_add_u32 v{dst}, v199, 4, v{dst}\nv_add_u32 v{dst}, s29, v{dst}')
        a('v_and_b32 v198, 7, v0'); copybase(vC3, 198)
        a(f'v_and_b32 v{vL15}, 15, v0\nv_add_u32 v197, 1, v{vL15}\nv_and_b32 v198, 7, v197'); copybase(vA, 198)
        a(f'v_lshrrev_b32 v197, 3, v197\nv_lshrrev_b32 v{vL4}, 4, v0\nv_add_u32 v197, v197, v{vL4}\nv_lshl_add_u32 v{vA}, v197, 4, v{vA}\nv_subrev_u32 v{vA}, 32, v{vA}')
        a(f'v_lshlrev_b32 v{vB}, 4, v{vL4}\nv_lshlrev_b32 v197, 5, v{vL15}\nv_sub_u32 v{vB}, v{vB}, v197\ns_add_u32 s26, s28, 480\nv_add_u32 v{vB}, s26, v{vB}')

    def d_value():
        a('s_cmp_eq_u32 s51, 0\ns_cselect_b32 s26, 16, 0\ns_lshl_b32 s58, s58, s26\ns_and_b32 s58, s58, 0xffff0000')

    a(f'v_mul_u32_u24 v59, 288, v50\nv_lshlrev_b32 v58, 4, v51\nv_sub_u32 v59, v59, v58\nv_add_u32 v59, {L_UB + 112}, v59')
    a('s_cmp_eq_u32 s27, 0\ns_cbranch_scc0 L_hw')
    snap = a.snapshot()
    a('v_lshrrev_b32 v140, 3, v0\nv_and_b32 v142, 7, v0\nv_lshlrev_b32 v142, 4, v142\nv_lshl_add_u32 v141, v140, 12, v142')
    a(f'v_mul_u32_u24 v140, 144, v140\nv_add_u32 v140, v140, v142\ns_mul_i32 s26, s51, {32*144}\ns_add_u32 s26, s26, {L_UB}\nv_add_u32 v140, s26, v140')
    ffn_addresses(a)
    conv_addresses()
    a(f's_lshl_b32 s26, s24, 8\ns_lshl_b32 s3, s25, 3\ns_add_u32 s3, s3, s26\ns_lshl_b32 s33, s51, 2\ns_add_u32 s3, s3, s33\nv_mov_b32 v{vFW}, s3\nv_lshl_add_u32 v{vFR}, v0, 2, s26')
    a('v_mov_b32 v200, 0\nv_mov_b32 v201, 0\nv_mov_b32 v202, 0\nv_mov_b32 v203, 0')
    a(f'v_subrev_u32 v197, 32, v{vC3}\nv_bfe_u32 v198, v0, 3, 1\nv_lshl_add_u32 v197, v198, 4, v197')
    a(f's_add_u32 s26, s28, 4096\nv_add_u32 v198, s26, v{vXR}\nv_cmp_gt_u32 vcc, 32, v0\nv_cndmask_b32 v197, v197, v198, vcc')
    a('s_mov_b32 exec_lo, 0x3fffffff\ns_mov_b32 exec_hi, 0x1ff\nds_write_b128 v197, v[200:203]\ns_mov_b64 exec, -1')
    stamp(a, opt, 'early')
    kv_compute()
    UO = 224
    tb = [a(f'ds_read_b128 v[{UO+4*i}:{UO+4*i+3}], v140 offset:{8*144*i}') for i in range(4)]
    make_tag(a)
    def tile_out(base, mod):
        a(f's_add_u32 s26, s37, {base}')
        for i in range(4):
            a.wait(tb[i]); a(f'buffer_store_dwordx4 v[{UO+4*i}:{UO+4*i+3}], v141, s[8:11], s26 offen {mod}')
            if i < 3: a('s_add_u32 s26, s26, 0x8000')
    tile_out(UR, '')
    stamp(a, opt, 'ust')
    d_value()
    a(f's_mov_b32 s33, {FU_L}\ns_waitcnt vmcnt(0)')
    flag_store(a, vFW, 's33', '')
    stamp(a, opt, 'uflag')
    L = 'L_pu'
    a(f's_mov_b32 s34, 0\ns_mov_b32 s35, {UR}\ns_lshl_b32 s18, s24, 15\ns_add_u32 s18, s18, {UR}')
    a(f'{L}:')
    a(f's_mov_b32 s33, {FU_L}\nbuffer_load_dword v78, v{vFR}, s[8:11], s33 offen sc1')
    a('s_waitcnt vmcnt(0)')
    a(f'v_cmp_ne_u32 vcc, s23, v78\ns_cbranch_vccz {L}_x')
    a(f's_add_u32 s34, s34, 1\ns_cmp_lt_u32 s34, 24\ns_cbranch_scc1 {L}')
    a(f's_cmp_eq_u32 s34, 24\ns_cbranch_scc0 {L}_n')
    tile_out(URG, 'sc1')
    a(f's_mov_b32 s33, {FU_G}\ns_waitcnt vmcnt(0)')
    flag_store(a, vFW, 's33', 'sc1')
    a(f'{L}_n:')
    a(f's_cmp_gt_u32 s34, {SPIN}\ns_cbranch_scc1 {L}_x')
    a(f's_mov_b32 s33, {FU_G}\nbuffer_load_dword v78, v{vFR}, s[8:11], s33 offen sc1')
    a('s_waitcnt vmcnt(0)\nv_and_b32 v79, -16, v78')
    a(f'v_cmp_ne_u32 vcc, s42, v79\ns_cbranch_vccnz {L}')
    a(f's_mov_b32 s35, {URG}\nv_cmp_ne_u32 vcc, s23, v78\ns_cbranch_vccz {L}_x\ns_mov_b32 s18, {XNL}')
    a(f'{L}_x:')
    a('s_waitcnt vmcnt(0)')
    stamp(a, opt, 'upoll')
    a('s_add_u32 s3, s30, s35\ns_mov_b32 s26, s28')
    for i in range(4):
        a('s_mov_b32 m0, s26\ns_add_u32 s26, s26, 1024')
        tud = a(f'buffer_load_dwordx4 v{vXR}, s[8:11], s3 offen sc1 lds\ns_add_u32 s3, s3, 1024')
    a(f'v_mov_b32 v78, s18\nv_mov_b32 v79, {L_LOC}\nds_write_b32 v79, v78')
    a.wait(tud)
    stamp(a, opt, 'hcp')
    a('s_waitcnt lgkmcnt(0)\ns_barrier')
    q_and_touch(a, False)
    stamp(a, opt, 'cstart')
    conv_phase(a, opt, 0, None)
    stamp(a, opt, 'yst')
    a('s_branch L_join')
    a('L_hw:'); a.restore(snap)
    code_prefetch(a)
    a(f's_add_u32 s26, s37, {UR}\nv_and_b32 v142, 31, v0\nv_lshlrev_b32 v142, 12, v142\nbuffer_load_dword v{vD1}, v142, s[8:11], s26 offen {opt.get("utouch", "sc1").replace("_", " ")}')
    flag_touch(a)
    a(f's_mov_b32 s4, s34\ns_mov_b32 s5, s35\ns_mov_b32 s6, {448*4096}')
    a(f'v_add_u32 v140, s30, v{vXR}\nv_subrev_u32 v141, 16, v140\nv_cmp_eq_u32 vcc, 0, v0\nv_cndmask_b32 v142, v141, v56, vcc')
    HL = 144
    th = []
    for st in range(4):
        a(f'buffer_load_dwordx4 v[{HL+8*st}:{HL+8*st+3}], v{142 if st == 0 else 141}, s[4:7], 0 offen offset:{1024*st} {NT}')
        th.append(a(f'buffer_load_dwordx4 v[{HL+8*st+4}:{HL+8*st+7}], v140, s[4:7], 0 offen offset:{1024*st} {NT}'))
    a('s_lshl_b32 s26, s24, 5\ns_add_u32 s26, s26, s25\ns_and_b32 s48, s26, 3\ns_lshl_b32 s48, s48, 1\ns_add_u32 s48, s48, s51\ns_lshr_b32 s50, s26, 2')
    a('v_mul_u32_u24 v176, 2341, v0\nv_lshrrev_b32 v176, 16, v176\nv_mul_u32_u24 v177, 28, v176\nv_sub_u32 v177, v0, v177')
    a('v_mul_u32_u24 v178, 3584, v176\nv_lshl_add_u32 v178, v177, 4, v178\nv_cmp_gt_u32 vcc, 56, v0\nv_cndmask_b32 v222, v56, v178, vcc')
    a(f's_mul_i32 s26, s50, {8*3584}\ns_mul_i32 s3, s48, 448\ns_add_u32 s26, s26, s3')
    a(f's_mov_b32 s12, s44\ns_mov_b32 s13, s45\ns_mov_b32 s44, s46\ns_mov_b32 s45, s47\ns_mov_b32 s14, {448*3584}\ns_mov_b32 s46, s14\ns_mov_b32 s47, 0x20000')
    WL = 224
    tl = []
    a('s_mov_b32 s59, s26')
    def wloads():
        for it in range(4):
            tl.append((a(f'buffer_load_dwordx4 v[{WL+8*it}:{WL+8*it+3}], v222, s[12:15], s59 offen {NT}'),
                       a(f'buffer_load_dwordx4 v[{WL+8*it+4}:{WL+8*it+7}], v222, s[44:47], s59 offen {NT}')))
            a(f's_add_u32 s59, s59, {2*3584}')
    ffn_addresses(a)
    conv_addresses()
    stamp(a, opt, 'early')
    kv_compute()
    make_tag(a)
    d_value()
    a(f'v_add_u32 v140, s29, v{vXR}')
    for st in range(4):
        d = HL + 8 * st; e = 88; o = 96
        a.wait(th[st])
        cb = lambda c: c * 4352 + 16 * DELTA[c] + 1024 * st - (16 if c else 0)
        a(f'ds_write_b128 v140, v[{d+4}:{d+7}] offset:{cb(0)}')
        for i in range(1, 4): a(f'v_mov_b32 v{o+i-1}, v{d+i}')
        a(f'ds_write_b128 v140, v[{d+2}:{d+5}] offset:{cb(4)}')
        for i in range(4, 7): a(f'v_mov_b32 v{o+i-1}, v{d+i}')
        a(f'ds_write_b128 v140, v[{o}:{o+3}] offset:{cb(2)}')
        for i in range(3): a(f'v_alignbit_b32 v{e+i}, v{d+i+1}, v{d+i}, 16')
        a(f'ds_write_b128 v140, v[{o+2}:{o+5}] offset:{cb(6)}')
        for i in range(3, 6): a(f'v_alignbit_b32 v{e+i}, v{d+i+1}, v{d+i}, 16')
        a(f'ds_write_b128 v140, v[{e}:{e+3}] offset:{cb(1)}')
        for i in range(1, 4): a(f'v_alignbit_b32 v{o+8+i-1}, v{d+i+1}, v{d+i}, 16')
        a(f'ds_write_b128 v140, v[{e+2}:{e+5}] offset:{cb(5)}')
        for i in range(4, 7): a(f'v_alignbit_b32 v{o+8+i-1}, v{d+i+1}, v{d+i}, 16')
        a(f'ds_write_b128 v140, v[{o+8}:{o+11}] offset:{cb(3)}')
        a(f'ds_write_b128 v140, v[{o+10}:{o+13}] offset:{cb(7)}')
    stamp(a, opt, 'ust')
    a(f's_mul_i32 s26, s51, {8*W1P}\ns_add_u32 s26, s26, {L_WS}')
    a(f'v_mul_u32_u24 v220, {W1P}, v176\nv_lshl_add_u32 v220, v177, 5, v220\nv_add_u32 v220, s26, v220')
    a(f'v_lshrrev_b32 v142, 4, v0\nv_bfe_u32 v143, v0, 2, 2\nv_mul_u32_u24 v221, {W1P}, v143\nv_mul_u32_u24 v143, 224, v142\nv_add_u32 v221, v221, v143')
    a(f'v_and_b32 v143, 3, v0\nv_lshl_add_u32 v221, v143, 3, v221\nv_add_u32 v221, s26, v221')
    a(f's_mov_b32 s26, 150528\nv_mul_lo_u32 v223, v142, s26\nv_and_b32 v143, 15, v0\nv_lshl_add_u32 v223, v143, 4, v223')
    a(f's_lshl_b32 s26, s48, 8\ns_lshl_b32 s3, s50, 2\ns_add_u32 s26, s26, s3\ns_add_u32 s26, s26, {F_W}\nv_mov_b32 v213, s26')
    a(f's_mul_i32 s48, s48, {4*150528}\ns_lshr_b32 s3, s50, 2\ns_mul_i32 s3, s3, 7168\ns_add_u32 s48, s48, s3\ns_and_b32 s3, s50, 3\ns_lshl_b32 s3, s3, 8\ns_add_u32 s48, s48, s3\ns_add_u32 s48, s48, {WW}\ns_add_u32 s49, s48, 4096')
    a('s_waitcnt lgkmcnt(0)')
    stamp(a, opt, 'uflag'); stamp(a, opt, 'upoll'); stamp(a, opt, 'hcp')
    a('s_barrier')
    stamp(a, opt, 'cstart')
    wloads()
    q_and_touch(a, False)
    a(f'v_mov_b32 v79, {L_LOC}')
    a.wait(a('ds_read_b32 v78, v79'))
    a('v_readfirstlane_b32 s18, v78')
    WO = 224
    tr = []; tws = []
    WP = opt.get('wproc', 5)
    def hook(it):
        if it == WP:
            a('s_mov_b32 exec_hi, 0xffffff')
            for i in range(4):
                g, u = WL + 8 * i, WL + 8 * i + 4
                a.wait(*tl[i])
                a(f'ds_write2_b32 v220, v{g}, v{u} offset0:0 offset1:1\nds_write2_b32 v220, v{g+1}, v{u+1} offset0:2 offset1:3')
                a(f'ds_write2_b32 v220, v{g+2}, v{u+2} offset0:4 offset1:5\nds_write2_b32 v220, v{g+3}, v{u+3} offset0:6 offset1:7')
                if i < 3: a(f'v_add_u32 v220, {2*W1P}, v220')
            a('s_mov_b64 exec, -1')
        if it == WP + 1:
            for j in range(7):
                a(f'ds_read_b64_tr_b16 v[{WO+4*j}:{WO+4*j+1}], v221 offset:{32*j}')
                tr.append(a(f'ds_read_b64_tr_b16 v[{WO+4*j+2}:{WO+4*j+3}], v221 offset:{32*j + 4*W1P}'))
        if it == WP + 2:
            for j in range(7):
                a.wait(tr[j])
                tws.append(a(f'buffer_store_dwordx4 v[{WO+4*j}:{WO+4*j+3}], v223, s[8:11], {"s48" if j < 4 else "s49"} offen offset:{1024*(j & 3)} sc1'))
    conv_phase(a, opt, 1, hook)
    a.wait(tws[-1])
    flag_store(a, 213, '0', 'sc1')
    stamp(a, opt, 'yst')
    a('s_branch L_join')
    a('L_spare:')
    a.reset_counters()
    a('s_waitcnt lgkmcnt(0)')
    a('s_load_dword s43, s[8:9], 0x0')
    a(f's_mov_b32 s12, s52\ns_mov_b32 s13, s53\ns_mov_b32 s14, {1792*896}')
    a('v_lshrrev_b32 v72, 4, v0\nv_lshlrev_b32 v72, 1, v72\nv_bfe_u32 v73, v0, 2, 1\nv_add_u32 v72, v72, v73\nv_bfe_u32 v73, v0, 3, 1\nv_lshl_add_u32 v72, v73, 3, v72')
    a('v_mul_u32_u24 v72, 896, v72\nv_and_b32 v73, 3, v0\nv_lshl_add_u32 v72, v73, 4, v72')
    for rep in range(2):
        a(f's_add_u32 s26, s25, {32*rep}\ns_and_b32 s{48+2*rep}, s26, 7\ns_lshr_b32 s{49+2*rep}, s26, 3')
        k2 = f's{49+2*rep}'; sl = f's{48+2*rep}'
        a(f's_mul_i32 s28, {k2}, 7\ns_add_u32 s28, s28, s22')
        a(f's_sub_u32 s29, {k2}, 4\ns_lshl_b32 s29, s29, 1\ns_lshr_b32 s30, s22, 1\ns_add_u32 s29, s29, s30\ns_mul_i32 s29, s29, 7')
        a('s_and_b32 s30, s22, 1\ns_add_u32 s29, s29, s30\ns_add_u32 s29, s29, 4')
        a(f's_cmp_lt_u32 {k2}, 4\ns_cselect_b32 s28, s28, s29')
        a(f's_mul_i32 s29, s22, 7\ns_add_u32 s29, s29, 6\ns_cmp_ge_u32 {k2}, 6\ns_cselect_b32 s28, s29, s28')
        a(f's_mul_i32 s29, {sl}, 28\ns_add_u32 s28, s28, s29\ns_mul_i32 s28, s28, 7168')
        a(f's_mul_i32 s29, s22, 7168\ns_add_u32 s29, s29, {28672*rep}')
        for i in range(7):
            a('s_mov_b32 m0, s29\ns_add_u32 s29, s29, 1024')
            tdm = a(f'buffer_load_dwordx4 v{vXR}, s[12:15], s28 offen {NT} lds\ns_add_u32 s28, s28, 1024')
    ffn_addresses(a)
    flag_touch(a)
    q_and_touch(a, True)
    a(f's_mov_b32 s18, {XNL}')
    a.wait(tdm)
    a('s_waitcnt lgkmcnt(0)\ns_barrier')
    make_tag(a)
    for rep in range(2):
        k2 = f's{49+2*rep}'; sl = f's{48+2*rep}'
        a(f's_xor_b32 s35, {k2}, s22\ns_cmp_lt_u32 {k2}, 4\ns_cselect_b32 s35, s35, {k2}')
        a(f's_lshl_b32 s28, {sl}, 2\ns_add_u32 s28, s28, s22\ns_mul_i32 s28, s28, 150528\ns_add_u32 s28, s28, {WW + 98*1024}')
        a(f's_cmp_ge_u32 {k2}, 7\ns_cselect_b32 s28, {OOB}, s28\ns_mul_i32 s29, s22, 7')
        tr = []
        for j in range(7):
            a(f's_add_u32 s26, s29, {j}\ns_lshr_b32 s3, s26, 1\ns_lshl_b32 s3, s3, 6\ns_and_b32 s26, s26, 1\ns_lshl_b32 s26, s26, 3\ns_add_u32 s26, s26, s3\ns_add_u32 s26, s26, {28672*rep}')
            a(f'v_add_u32 v73, s26, v72')
            o = 80 + 28 * rep + 4 * j
            a(f'ds_read_b64_tr_b16 v[{o}:{o+1}], v73')
            tr.append(a(f'ds_read_b64_tr_b16 v[{o+2}:{o+3}], v73 offset:14336'))
        for j in range(7):
            g = [g for g in GROUPS if j in g][0]
            o = 80 + 28 * rep + 4 * j
            a(f's_mul_i32 s26, s35, {1024*len(g)}\ns_add_u32 s26, s26, s28\ns_add_u32 s26, s26, {1024*g2pos(j, 0)}')
            a.wait(tr[j])
            a(f'buffer_store_dwordx4 v[{o}:{o+3}], v{vXR}, s[8:11], s26 offen sc1')
    a('s_waitcnt vmcnt(0)\ns_barrier')
    for rep in range(2):
        k2 = f's{49+2*rep}'; sl = f's{48+2*rep}'
        a(f's_lshl_b32 s26, {sl}, 8\ns_lshl_b32 s3, {k2}, 2\ns_add_u32 s26, s26, s3\ns_add_u32 s26, s26, {F_W + 224}')
        a(f's_cmp_ge_u32 {k2}, 7\ns_cselect_b32 s26, {OOB}, s26\ns_cmp_eq_u32 s22, 0\ns_cselect_b32 s26, s26, {OOB}\nv_mov_b32 v213, s26')
        flag_store(a, 213, '0', 'sc1')
    if opt.get('stamps'):
        for n in list(STN[1:]): stamp(a, opt, n)
    a('L_join:')
    a.vm_done = a.vm_issued - 5
    a(f's_lshl_b32 s26, s21, 8\ns_add_u32 s26, s26, {F_W}\nv_min_u32 v219, 62, v0\nv_lshl_add_u32 v219, v219, 2, s26')
    a('s_waitcnt vmcnt(4)')
    for e in range(2):
        for i in range(4):
            a(f'v_lshlrev_b32 v{X+8*e+2*i}, 16, v{YP+4*e+i}\nv_and_b32 v{X+8*e+2*i+1}, 0xffff0000, v{YP+4*e+i}')
    stats(a, 0)
    norm_to(a, Z)
    a(f's_mov_b32 s52, s54\ns_mov_b32 s53, s55\ns_mov_b32 s54, {XBYTES}\ns_mov_b32 s55, 0x20000')
    a(f's_lshl_b32 s26, s21, 4\ns_lshl_b32 s3, s22, 2\ns_add_u32 s26, s26, s3\ns_lshl_b32 s3, s20, 8\ns_add_u32 s26, s26, s3\nv_mov_b32 v{vFW}, s26\nv_lshl_add_u32 v{vFR}, v0, 2, s3')
    S = Stream(a)
    WPOS = opt.get('wpollpos', 2)
    def wpoll():
        poll_masked(a, 219, '0', 'pw')
        stamp(a, opt, 'wpoll')
    if WPOS == 0:
        wpoll(); S.prefetch(opt.get('nA', 8))
    L = 'L_py'
    YL = T0 + 32
    a('s_mov_b32 s34, 0')
    a(f'{L}:')
    for i in range(8):
        a(f's_mov_b32 s33, {YT + 8192*i}')
        a(f'buffer_load_dwordx2 v[{YL+2*i}:{YL+2*i+1}], v{vY}, s[8:11], s33 offen sc1')
    a(f's_add_u32 s34, s34, 1\ns_cmp_gt_u32 s34, {SPIN}\ns_cbranch_scc1 {L}_x')
    a('s_waitcnt vmcnt(0)')
    a(f'v_xor_b32 v{vPL}, s42, v{YL+1}\nv_xor_b32 v{vD0}, s42, v{YL+3}')
    for i in range(2, 8):
        r = vPL if i % 2 == 0 else vD0
        a(f'v_bitop3_b32 v{r}, v{YL+2*i+1}, s42, v{r} bitop3:0xbe')
    a(f'v_or_b32 v{vPL}, v{vPL}, v{vD0}\nv_cmp_ne_u32 vcc, 0, v{vPL}\ns_and_b64 vcc, vcc, s[16:17]\ns_cbranch_scc1 {L}')
    a(f'{L}_x:\ns_waitcnt vmcnt(0)')
    for i in range(8): a(f'v_mov_b32 v{YP+i}, v{YL+2*i}')
    stamp(a, opt, 'y')
    S.win = None
    if WPOS == 1: wpoll()
    if WPOS <= 1: S.prefetch(opt.get('nB', 12))
    unpack_y(a)
    gate_and_norm(a, 1, lambda e: a(f's_add_u32 s33, s18, {14336*e}\nbuffer_store_dwordx4 v[{XO+4*e}:{XO+4*e+3}], v{vXS}, s[8:11], s33 offen'))
    a(f's_mov_b32 s33, {F_X0}\ns_waitcnt vmcnt(0)')
    flag_store(a, vFW, 's33', '')
    stamp(a, opt, 'E0')
    if WPOS == 2: wpoll()
    S.prefetch(opt.get('nC', 7))
    L = 'L_px'
    a(f's_mov_b32 s34, 0\ns_mov_b32 s35, s18\ns_mov_b32 s37, 0')
    a(f'{L}:')
    a(f's_mov_b32 s33, {F_X0}\nbuffer_load_dword v{vPL}, v{vFR}, s[8:11], s33 offen sc1')
    a('s_waitcnt vmcnt(0)')
    a(f'v_cmp_eq_u32 vcc, s23, v{vPL}\nv_and_b32 v{vPL}, -16, v{vPL}\nv_cmp_eq_u32 s[28:29], s42, v{vPL}\ns_cmp_eq_u32 vcc_lo, -1\ns_cbranch_scc1 {L}_x')
    a(f's_add_u32 s34, s34, 1\ns_cmp_eq_u32 s34, 24\ns_cbranch_scc0 {L}_n')
    for e in range(2):
        a(f's_mov_b32 s33, {XNG1 + 14336*e}\nbuffer_store_dwordx4 v[{XO+4*e}:{XO+4*e+3}], v{vXS}, s[8:11], s33 offen sc1')
    a(f's_mov_b32 s33, {F_X0}\ns_waitcnt vmcnt(0)')
    flag_store(a, vFW, 's33', 'sc1', off=128)
    a(f'{L}_n:')
    a(f's_cmp_gt_u32 s34, {SPIN}\ns_cbranch_scc1 {L}_x')
    a(f's_cmp_eq_u32 s29, -1\ns_cbranch_scc0 {L}')
    a(f's_mov_b32 s35, {XNG1}\ns_cmp_eq_u32 vcc_hi, -1\ns_cselect_b32 s37, 0, 1')
    a(f'{L}_x:')
    a.vm_done = a.vm_issued - 1
    stamp(a, opt, 'px0')
    G0 = opt.get('g0', 4)
    S.win = None
    tg = gather_xn(a)
    S.prefetch(opt.get('nD', 14))
    a(f's_lshl_b32 s26, s20, 7\nv_subrev_u32 v{vFW}, s26, v{vFW}\nv_and_b32 v{vFR}, 31, v0\nv_lshl_add_u32 v{vFR}, v{vFR}, 2, s26')
    a.wait(tg[G0 - 1])
    a('s_barrier')
    stamp(a, opt, 'gath0')
    a('s_cmp_eq_u32 s37, 0\ns_cbranch_scc0 L_global')
    snap = a.snapshot(); sst = S.state(); tg0 = tg
    for mode in 'LG':
        if mode == 'G':
            a('L_end:\ns_endpgm\nL_code_end:\nL_global:'); a.restore(snap); S.set_state(sst)
        loc = mode == 'L'
        fm = '' if loc else 'sc1'
        tg = tg0
        for layer in range(2):
            pbase = PB1 if (loc or layer == 0) else PB2
            pmod = (opt.get('p0mod', '') if layer == 0 else '') if loc else 'sc1'
            touch = opt.get(f'touch{layer}', 'none' if layer == 0 else 'sc1').replace('_', ' ').replace('plain', '') if loc else 'none'
            ffn(a, S, opt, layer, tg, pbase, pmod, None if touch == 'none' else touch)
            a(f's_mov_b32 s33, {F_P + 4096*layer}\ns_waitcnt vmcnt(0)')
            stamp(a, opt, f'drain{layer}')
            flag_store(a, vFW, 's33', fm)
            if layer == 0: unpack_y(a)
            poll_masked(a, vFR, 's33', 'pp')
            stamp(a, opt, f'pp{layer}')
            toks = []
            for sidx in range(8):
                a(f's_mov_b32 s33, {pbase + 7168*sidx}')
                for e in range(2):
                    r = T0 + 8 * sidx + 4 * e
                    toks.append(a(f'buffer_load_dwordx4 v[{r}:{r+3}], v{vPR}, s[8:11], s33 offen offset:{256*e} {opt.get(f"pld{layer}", "nt" if layer == 0 else "sc1").replace("_", " ") if loc else "sc1"}'))
            if layer == 0:
                S.win = None
                for p in STR[:NR]: S.issue(1, p)
            for sidx in range(8):
                for e in range(2):
                    r = T0 + 8 * sidx + 4 * e
                    a.wait(toks[2 * sidx + e])
                    for i in range(4):
                        x = X + 8 * (i >> 1) + 4 * e + 2 * (i & 1)
                        a(f'v_dot2_f32_bf16 v{x}, v{r+i}, s40, v{x}\nv_dot2_f32_bf16 v{x+1}, v{r+i}, s41, v{x+1}')
            if layer == 1: break
            stamp(a, opt, 'red0')
            stats(a, 2)
            norm_to(a, Z)
            xn2 = 's18' if loc else XNG2
            a(f's_mov_b32 s35, {xn2}')
            gate_and_norm(a, 3, lambda e: a(f's_add_u32 s33, s35, {14336*e}\nbuffer_store_dwordx4 v[{XO+4*e}:{XO+4*e+3}], v{vXS}, s[8:11], s33 offen {fm}'))
            a(f's_mov_b32 s33, {F_X1}\ns_waitcnt vmcnt(0)')
            flag_store(a, vFW, 's33', fm)
            stamp(a, opt, 'E1')
            poll_masked(a, vFR, 's33', 'px')
            stamp(a, opt, 'px1')
            tg = gather_xn(a)
            a.wait(tg[G0 - 1])
            a('s_barrier')
            stamp(a, opt, 'gath1')
        for e in range(2):
            for p in range(4):
                a(f'v_cvt_pk_bf16_f32 v{XO+4*e+p}, v{X+8*e+2*p}, v{X+8*e+2*p+1}')
            a(f'buffer_store_dwordx4 v[{XO+4*e}:{XO+4*e+3}], v{vQ}, s[52:55], 0 offen offset:{896*e}')
        a(f's_add_u32 s43, s43, 1\nv_mov_b32 v{vD0}, s43\ns_cmp_eq_u32 s2, 0\ns_cselect_b32 s26, 0, {OOB}\ns_mov_b64 exec, 1')
        a(f'buffer_store_dword v{vD0}, off, s[8:11], s26\ns_mov_b64 exec, -1')
        stamp(a, opt, 'end')
        dump_stamps(a, opt)
    a('s_endpgm')


def build(opt):
    a = Asm()
    gen(a, opt)
    s = HDR + f'; @launch grid=(256,1,1) block=(256,1,1) lds={LDS_BYTES}\n'
    if opt.get('stamps'): s += '; STAMPS k:' + ','.join(STN) + '\n'
    s += '.amdgcn_target "amdgcn-amd-amdhsa--gfx950"\n' + a.finalize()
    s += kernel_desc(NAME + '_kernel', 512, 102, accum=256)
    return s


if __name__ == '__main__':
    opt = {}
    for x in sys.argv[2:]:
        k, v = x.split('=')
        opt[k] = int(v) if v.lstrip('-').isdigit() else v
    open(sys.argv[1], 'w').write(build(opt))
```

```python
import sys, struct
from asmgen import *

NAME = 'interleave_layers__ssm_conv_h3__glu_gated_bilinear__prompt'
HDR = open('cdna_kernels/' + NAME + '.s.ref').read().split('; Override launch')[0]

EPOCH = 0
FU_L = 0x1000
FU_G = 0x2000
F_W = 0x3000
F_X0 = 0x5000
F_P = 0x7000
F_X1 = 0x9000
UR = 0x40000
XNL = 0x200000
YT = 0x3C0000
WW = 0x740000
URG = 0xBE0000
XNG1 = 0xDA0000
XNG2 = 0xF60000
PB1 = 0x1200000
PB2 = 0x2080000
STAMP = 0x2F00000
WS_BYTES = 0x3000000
OOB = 0x80000000
XBYTES = 2048 * 448 * 2
GROUPS = [(0, 1, 2), (3, 4), (5, 6)]
SPIN = 0x100000
f2u = lambda f: struct.unpack('<I', struct.pack('<f', f))[0]


def g2pos(j, step):
    base = 0
    for g in GROUPS:
        if j in g:
            return base + step * len(g) + (j - g[0])
        base += 7 * len(g)


STN = []
SSET = {'early': 'start ka kvi early kv kv2 ust uflag upoll hcp cstart mma end'.split(),
        'front': 'start cstart mma wst yst lnq wpa y E0 px0 wpoll gath0 g1_0 end'.split(),
        'all': 'start cstart yst y gath0 g1_0 g2_0 red0 gath1 g1_1 g2_1 pp1 end'.split(),
        'back': 'start gath0 g1_0 g2_0 pp0 red0 E1 px1 gath1 g1_1 g2_1 drain1 pp1 end'.split()}


def stamp(a, opt, n):
    if opt.get('stamps') and n in SSET[opt.get('sset', 'front')]:
        if n not in STN: STN.append(n)
        i = STN.index(n)
        assert i < 14
        a(f'{"s_memtime" if opt["stamps"] == 2 else "s_memrealtime"} s[{74+2*i}:{75+2*i}]')


def dump_stamps(a, opt):
    if not opt.get('stamps'):
        return
    a('s_waitcnt lgkmcnt(0) vmcnt(0)')
    if opt.get('dbg') is not None:
        a(f's_load_dwordx2 s[4:5], s[0:1], 88\ns_mov_b32 s6, 256\ns_lshl_b32 s26, s2, 2\ns_add_u32 s26, s26, s22\ns_cmp_eq_u32 s26, {opt["dbg"]}\ns_cselect_b32 s26, 0, {OOB}\ns_waitcnt lgkmcnt(0)')
        a('s_mov_b64 exec, 1')
        for i in range(1, min(17, len(STN))):
            a(f's_sub_u32 s3, s{74+2*i}, s74\nv_mov_b32 v2, s3\nbuffer_store_dword v2, off, s[4:7], s26 offset:{4*(i-1)}')
        a('s_mov_b64 exec, -1')
        return
    a(f's_lshl_b32 s26, s2, 2\ns_add_u32 s26, s26, s22\ns_lshl_b32 s26, s26, 7\ns_add_u32 s26, s26, {STAMP}')
    a('v_mov_b32 v1, 0\ns_mov_b64 exec, 1')
    for i in range(len(STN)):
        a(f'v_mov_b32 v2, s{74+2*i}\nbuffer_store_dword v2, v1, s[8:11], s26 offen offset:{4*i}')
    a('s_mov_b64 exec, -1')


L_XN = 0; L_H = 57344; L_ST = 125952
DELTA = [12, 0, 1, 4, 5, 8, 9, 12]
KC_UP = 4608; KC_H = 9216; KC_HP = 35328
KC_Y = KC_H + 2 * KC_HP
L_UB = 96256
L_WS = 105472
L_WA = 120320
L_LOC = 125440
LDS_BYTES = L_ST + 1024
W1P = 928

X = 16; YP = 32
vXR, vHB, vH1, vHa, vHb, vHc, vP, vPR, vXS, vQ, vW, vFW, vFR, vST, vSR = 1, 2, 3, 6, 7, 8, 9, 10, 11, 12, 13, 14, 15, 40, 41
vPL, vTAG, vEPS, vXG, vD0, vD1 = 42, 43, 44, 45, 46, 47
ACC = 48; RING = 160; NR = 14; XF = 224; HOWN = XF + 16
vY = 216; vTP = 217; vTQ = 218; vW2 = 219
T0 = ACC


def resident_set():
    res = [7 * k + j for k in range(14) for j in range(2)] + [98 + i for i in range(14, 49)]
    assert len(res) == 63
    return res


RES = resident_set()
STR = [p for p in range(147) if p not in RES]


class Stream:
    def __init__(self, a):
        self.a = a; self.tok = {}; self.win = None; self.limit = 98

    @staticmethod
    def reg(p):
        if p in RES:
            i = RES.index(p)
            return f'a[{4*i}:{4*i+3}]'
        n = STR.index(p) % NR
        return f'v[{RING + 4*n}:{RING + 4*n + 3}]'

    def issue(self, layer, p):
        if p < 98:
            k, j = divmod(p, 7)
            self.tok[(layer, p)] = self.a(f'buffer_load_dwordx4 {self.reg(p)}, v{vW if j < 4 else vW2}, s[8:11], s{60+k} offen offset:{(j & 3)*1024}')
            return
        w = p >> 2
        if w != self.win:
            self.a(f's_mov_b32 s31, {WW + w*4096}'); self.win = w
        self.tok[(layer, p)] = self.a(f'buffer_load_dwordx4 {self.reg(p)}, v{vW}, s[8:11], s31 offen offset:{(p & 3)*1024}')

    def prefetch(self, k):
        todo = sorted(p for p in set(STR[:NR] + RES) if (0, p) not in self.tok and p < self.limit)
        for p in todo[:k]: self.issue(0, p)
        return len(todo[:k])

    def refill(self, layer, p):
        n = STR.index(p) + NR
        if n < len(STR): self.issue(layer, STR[n])

    def wait(self, layer, p):
        self.a.wait(self.tok[(0 if p in RES else layer, p)])

    def state(self): return (dict(self.tok), None)

    def set_state(self, st): self.tok, self.win, self.limit = dict(st[0]), None, 98


def flag_store(a, vaddr, soff, mod, srd_='s[8:11]', off=0):
    a(f's_mov_b64 exec, 1\nbuffer_store_dword v{vTAG}, v{vaddr}, {srd_}, {soff} offen offset:{off} {mod}\ns_mov_b64 exec, -1')


def poll_masked(a, vaddr, soff, name):
    L = a.label(name)
    a('s_mov_b32 s34, 0')
    a(f'{L}:')
    a(f'buffer_load_dword v{vPL}, v{vaddr}, s[8:11], {soff} offen sc1')
    a(f's_add_u32 s34, s34, 1\ns_cmp_gt_u32 s34, {SPIN}\ns_cbranch_scc1 {L}_x')
    a(f's_waitcnt vmcnt(0)\nv_and_b32 v{vPL}, -16, v{vPL}')
    a(f'v_cmp_ne_u32 vcc, s42, v{vPL}\ns_cbranch_vccnz {L}')
    a(f'{L}_x:\ns_waitcnt vmcnt(0)')


def stats(a, rnd):
    t = T0 + 8
    for e in range(2):
        x = X + 8 * e; s = t + 4 * e
        a(f'v_pk_add_f32 v[{s}:{s+1}], v[{x}:{x+1}], v[{x+2}:{x+3}]')
        a(f'v_pk_mul_f32 v[{s+2}:{s+3}], v[{x}:{x+1}], v[{x}:{x+1}]')
        a(f'v_pk_add_f32 v[{s}:{s+1}], v[{s}:{s+1}], v[{x+4}:{x+5}]')
        a(f'v_pk_fma_f32 v[{s+2}:{s+3}], v[{x+2}:{x+3}], v[{x+2}:{x+3}], v[{s+2}:{s+3}]')
        a(f'v_pk_add_f32 v[{s}:{s+1}], v[{s}:{s+1}], v[{x+6}:{x+7}]')
        a(f'v_pk_fma_f32 v[{s+2}:{s+3}], v[{x+4}:{x+5}], v[{x+4}:{x+5}], v[{s+2}:{s+3}]')
        a(f'v_add_f32 v{s}, v{s}, v{s+1}')
        a(f'v_pk_fma_f32 v[{s+2}:{s+3}], v[{x+6}:{x+7}], v[{x+6}:{x+7}], v[{s+2}:{s+3}]')
    a(f'v_add_f32 v{t+2}, v{t+2}, v{t+3}\nv_add_f32 v{t+6}, v{t+6}, v{t+7}')
    S0, Q0, S1, Q1 = t, t + 2, t + 4, t + 6
    a(f'v_permlane32_swap_b32 v{S0}, v{S1}\nv_permlane32_swap_b32 v{Q0}, v{Q1}')
    a(f'v_add_f32 v{S0}, v{S0}, v{S1}\nv_add_f32 v{Q0}, v{Q0}, v{Q1}')
    a(f'v_permlane16_swap_b32 v{S0}, v{Q0}')
    a(f'v_add_f32 v{S0}, v{S0}, v{Q0}')
    a(f'v_add_f32_dpp v{S0}, v{S0}, v{S0} row_ror:4 row_mask:0xf bank_mask:0xf')
    a(f'v_add_f32_dpp v{S0}, v{S0}, v{S0} row_ror:8 row_mask:0xf bank_mask:0xf')
    a(f'ds_write_b32 v{vST}, v{S0} offset:{256*rnd}')
    a('s_waitcnt lgkmcnt(0)\ns_barrier')
    tk = [a(f'ds_read_b128 v[{t+4*i}:{t+4*i+3}], v{vSR} offset:{256*rnd + 16*i}') for i in range(4)]
    for e in range(2):
        s = t + 8 * e; q = s + 4
        a.wait(tk[2 * e + 1])
        a(f'v_pk_add_f32 v[{s}:{s+1}], v[{s}:{s+1}], v[{s+2}:{s+3}]\nv_pk_add_f32 v[{q}:{q+1}], v[{q}:{q+1}], v[{q+2}:{q+3}]')
        a(f'v_add_f32 v{s}, v{s}, v{s+1}\nv_add_f32 v{q}, v{q}, v{q+1}')
        a(f'v_mul_f32 v{s}, s36, v{s}\nv_fma_f32 v{q}, v{q}, s36, v{vEPS}')
        a(f'v_fma_f32 v{q}, -v{s}, v{s}, v{q}\nv_max_f32 v{q}, v{q}, v{vEPS}\nv_rsq_f32 v{T0+4*e}, v{q}')
        a(f'v_mul_f32_e64 v{T0+4*e+2}, -v{s}, v{T0+4*e}')


YF = T0 + 64; Z = T0 + 80; XO = T0 + 96


def norm_to(a, dst):
    for e in range(2):
        for p in range(4):
            x = X + 8 * e + 2 * p; z = dst + 8 * e + 2 * p
            a(f'v_pk_fma_f32 v[{z}:{z+1}], v[{x}:{x+1}], v[{T0+4*e}:{T0+4*e+1}], v[{T0+4*e+2}:{T0+4*e+3}] op_sel_hi:[1,0,0]')


def unpack_y(a):
    for i in range(8):
        a(f'v_lshlrev_b32 v{YF+i}, 16, v{YP+i}\nv_and_b32 v{YF+8+i}, 0xffff0000, v{YP+i}')


def gate_and_norm(a, rnd, store):
    for p in range(8):
        x = X + 2 * p
        a(f'v_pk_fma_f32 v[{x}:{x+1}], v[{Z+2*p}:{Z+2*p+1}], v[{YF+2*p}:{YF+2*p+1}], v[{x}:{x+1}]')
    stats(a, rnd)
    norm_to(a, Z)
    for e in range(2):
        for p in range(4):
            a(f'v_cvt_pk_bf16_f32 v{XO+4*e+p}, v{Z+8*e+2*p}, v{Z+8*e+2*p+1}')
        store(e)


def gather_xn(a):
    a(f's_mul_i32 s33, s22, 14336\ns_add_u32 s34, s33, s35')
    toks = []
    for i in range(14):
        a('s_mov_b32 m0, s33\ns_add_u32 s33, s33, 1024')
        toks.append(a(f'buffer_load_dwordx4 v{vXG}, s[8:11], s34 offen sc1 lds\ns_add_u32 s34, s34, 1024'))
    return toks


def ffn(a, S, opt, layer, tg, pbase, pmod, touch, settle, tagn):
    acc1 = lambda j, mt: ACC + 4 * (mt * 7 + j)
    acc2 = lambda j, mt: ACC + 4 * (j * 4 + mt)
    xr = lambda buf, mt: XF + 16 * buf + 4 * mt
    wwait = lambda p: S.wait(layer, p)
    a(f's_mov_b32 s38, {pbase}\ns_mov_b32 s39, {pbase + 4*57344}')
    xt = {}
    def xload(k, mt):
        xt[(k, mt)] = a(f'ds_read_b128 v[{xr(k & 1, mt)}:{xr(k & 1, mt)+3}], v{vXR} offset:{(mt*14 + k)*1024}')
    for mt in range(4): xload(0, mt)
    def conv_h(mt):
        ops = []
        for j in range(7):
            d = acc1(j, mt)
            dst = (HOWN + 4 * mt + j) if j < 4 else (acc1(4, mt) + (j - 4))
            if opt.get('pkh', 1): ops.append(f'v_pk_mul_f32 v[{d}:{d+1}], v[{d}:{d+1}], v[{d+2}:{d+3}]')
            else: ops += [f'v_mul_f32 v{d}, v{d}, v{d+2}', f'v_mul_f32 v{d+1}, v{d+1}, v{d+3}']
            ops.append(f'v_cvt_pk_bf16_f32 v{dst}, v{d}, v{d+1}')
        h = HOWN + 4 * mt; o = acc1(4, mt)
        ops.insert(8 if opt.get('pkh', 1) else 12, f'ds_write_b128 v{vHa}, v[{h}:{h+3}] offset:{7168*mt}')
        ops.append(f'ds_write_b64 v{vHb}, v[{o}:{o+1}] offset:{7168*mt}')
        ops.append(f'ds_write_b32 v{vHc}, v{o+2} offset:{7168*mt}')
        return ops
    G0 = opt.get('g0', 4)
    late = []
    for k in range(14):
        last = k == 13
        order = [(j, mt) for j in range(7) for mt in range(4)] if not last else [(j, mt) for mt in range(4) for j in range(7)]
        fill = []
        gap = {}
        for i, f in enumerate(late): gap.setdefault(1 + i, []).append(f)
        late = []
        if not last:
            for mt in range(4): gap.setdefault(3 + 4 * mt, []).append(lambda k=k, mt=mt: xload(k + 1, mt))
            for j in range(7):
                p = 7 * k + j
                if p in STR:
                    f = lambda p=p: S.refill(layer, p)
                    if j < 6: gap.setdefault(4 * j + 5, []).append(f)
                    else: late.append(f)
            if layer == 0:
                for i in range(opt.get('rps', 2)): gap.setdefault((5, 9, 22, 26)[i], []).append(lambda: S.prefetch(1))
        for n, (j, mt) in enumerate(order):
            p = 7 * k + j
            if opt.get('wmerge', 1) and not last and k > 0:
                if n == 0: a.wait(*[xt[(k, m)] for m in range(4)])
                if mt == 0 and j in (0, 2, 4): a.wait(*[S.tok[(0 if q in RES else layer, q)] for q in range(p, p + (2 if j < 4 else 3))])
            wwait(p); a.wait(xt[(k, mt)])
            d = acc1(j, mt)
            c = '0' if k == 0 else f'v[{d}:{d+3}]'
            a(f'v_mfma_f32_16x16x32_bf16 v[{d}:{d+3}], {S.reg(p)}, v[{xr(k & 1, mt)}:{xr(k & 1, mt)+3}], {c}')
            if k == G0 - 1 and n == 2:
                a.wait(tg[-1]); a('s_barrier')
            if layer == 0 and k == 3 and n == 14: twc = a('buffer_load_dword v222, v221, s[8:11], 0 offen sc1')
            if layer == 0 and k == 6 and n == 14:
                assert all(q < 98 for (_, q) in S.tok)
                settle(twc, 222, 221, 'wc' + tagn)
                S.limit = 147
            for f in gap.get(n, []): f()
            if last:
                if mt >= 1 and j == 2: fill += conv_h(mt - 1)
                for _ in range(3 if opt.get('pkh', 1) else 4):
                    if fill: a(fill.pop(0))
                if mt == 3 and p in STR: S.refill(layer, p)
        for f in fill: a(f)
    stamp(a, opt, f'g1_{layer}')
    if layer == 0 and touch is not None: S.prefetch(99)
    if touch is not None:
        a(f'buffer_load_dword v{vD0}, v{vTP}, s[8:11], s38 offen {touch}\nbuffer_load_dword v{vD1}, v{vTQ}, s[8:11], s38 offen {touch}')
    pend = conv_h(3)
    nxt = list(STR[:NR]) if opt.get('ringg2', 1) == 1 else []
    ht = {}
    hreg = lambda n, mt: XF + 16 * ((n + 1) & 1) + 4 * mt
    def hload(n, mt):
        st = n % 7
        addr, off = (vHa if st == 0 else vH1 + st - 1, 7168 * mt) if st < 4 else (vHB, 7168 * mt + 1024 * st)
        ht[(n, mt)] = a(f'ds_read_b128 v[{hreg(n, mt)}:{hreg(n, mt)+3}], v{addr} offset:{off}')
    for gi, g in enumerate(GROUPS):
        for step in range(7):
            ng = 7 * gi + step
            order = [(j, mt) for mt in range(4) for j in g] if ng == 0 else [(j, mt) for j in g for mt in range(4)]
            for n, (j, mt) in enumerate(order):
                pp = 98 + g2pos(j, step)
                wwait(pp)
                if ng > 1 and n == 0 and opt.get('wmerge', 1): a.wait(*[ht[(ng, m)] for m in range(4)])
                if ng > 0: a.wait(ht[(ng, mt)])
                d = acc2(j, mt)
                c = '0' if step == 0 else f'v[{d}:{d+3}]'
                a(f'v_mfma_f32_16x16x32_bf16 v[{d}:{d+3}], {S.reg(pp)}, v[{hreg(ng, mt)}:{hreg(ng, mt)+3}], {c}')
                if ng == 0:
                    for _ in range(2 if opt.get('pkh', 1) else 3):
                        if pend: a(pend.pop(0))
                    if n == 8:
                        assert not pend
                        a('s_waitcnt lgkmcnt(0)\ns_barrier')
                        hload(1, 0); hload(1, 1)
                    if n in (9, 10): hload(1, n - 7)
                elif ng < 7 * len(GROUPS) - 1 and n < 4: hload(ng + 1, n)
                if mt == 3 and pp in STR: S.refill(layer, pp)
                if layer == 0 and mt == 1:
                    if not S.prefetch(1) and nxt and pp >= 98 + NR + 1: S.issue(1, nxt.pop(0))
                if step >= 1 and (n >= 4 or opt.get('pper', 2) == 1):
                    for _ in range(opt.get('pper', 2)):
                        if pend: a(pend.pop(0))
        assert not pend
        for j in g:
            for aa in range(2):
                d = acc2(j, 2 * aa)
                for i in range(4):
                    pend.append(f'v_cvt_pk_bf16_f32 v{d+i}, v{d+2*i}, v{d+2*i+1}')
                pend.append(f'buffer_store_dwordx4 v[{d}:{d+3}], v{vP}, s[8:11], s{38+aa} offen offset:{256*j} {pmod}')
    stamp(a, opt, f'g2_{layer}')
    for f in pend: a(f)


def conv_phase(a, opt, which, post_barrier):
    vA, vB, vC3, vL15, vL4, vLN = 192, 193, 194, 195, 196, 197
    A0, B0, CA = 64, 128, 48
    for half, qs in ((((0, (7, 4, 3, 0)), (1, (6, 5, 2, 1))), ((0, (7, 5, 3, 0)), (1, (6, 4, 2, 1))), ((0, (7, 5, 4, 0)), (1, (6, 3, 2, 1))))[opt.get('qsplit', 2)][which],):
        qmax = qs[0]
        order = list(range(8))
        def loads(it):
            g0 = order[it]; buf = it & 1
            seq = []
            for i in range(qmax + 1):
                seq += [('A', i), ('B', qmax - i)]
            return [(k, i, (f'ds_read_b128 v[{A0+32*buf+4*i}:{A0+32*buf+4*i+3}], v{vA} offset:{512*i + 64*g0}' if k == 'A' else
                            f'ds_read_b128 v[{B0+32*buf+4*i}:{B0+32*buf+4*i+3}], v{vB} offset:{512*(7-i) + 64*g0}')) for k, i in seq]
        toks = {}
        for k, i, txt in loads(0):
            toks[(0, k, i)] = a(txt)
        for it in range(8):
            buf = it & 1
            nxt = loads(it + 1) if it < 7 else []
            if post_barrier: post_barrier(it)
            pairs = [(q, g1) for g1 in range(qmax + 1) for q in qs if q >= g1]
            for n, (q, g1) in enumerate(pairs):
                m = q - g1
                a.wait(toks[(it, 'A', g1)], toks[(it, 'B', m)])
                acc = CA + 4 * qs.index(q)
                c = '0' if (it == 0 and g1 == 0) else f'v[{acc}:{acc+3}]'
                a(f'v_mfma_f32_16x16x32_bf16 v[{acc}:{acc+3}], v[{A0+32*buf+4*g1}:{A0+32*buf+4*g1+3}], v[{B0+32*buf+4*m}:{B0+32*buf+4*m+3}], {c}')
                if nxt:
                    k, i, txt = nxt.pop(0)
                    toks[(it + 1, k, i)] = a(txt)
            assert not nxt
        stamp(a, opt, 'mma')
        a(f'v_lshlrev_b32 v198, 5, v{vL15}\nv_lshl_add_u32 v198, v{vL4}, 3, v198')
        a(f's_add_u32 s26, s28, {4088 - 3584}\nv_sub_u32 v199, s26, v198')
        tu = [a(f'ds_read_b64 v[{64+2*i}:{65+2*i}], v199 offset:{512*(7-q)}') for i, q in enumerate(qs)]
        a(f's_lshl_b32 s26, s22, 12\ns_add_u32 s26, s26, {KC_Y}\nv_lshl_add_u32 v198, v198, 1, s26\nv_add_u32 v199, s26, v{vXR}')
        for i, q in enumerate(qs):
            acc = CA + 4 * i
            a.wait(tu[i])
            lo, hi = 64 + 2 * i, 65 + 2 * i
            a(f'v_and_b32 v72, 0xffff0000, v{hi}\nv_lshlrev_b32 v73, 16, v{hi}\nv_and_b32 v74, 0xffff0000, v{lo}\nv_lshlrev_b32 v75, 16, v{lo}')
            for r in range(4):
                a(f'v_fmac_f32 v{acc+r}, s58, v{72+r}')
            a(f'v_cvt_pk_bf16_f32 v{acc}, v{acc}, v{acc+1}\nv_cvt_pk_bf16_f32 v{acc+2}, v{acc+2}, v{acc+3}')
            a(f'v_mov_b32 v{acc+1}, s42\nv_mov_b32 v{acc+3}, s42')
            a(f'ds_write_b128 v198, v[{acc}:{acc+3}] offset:{1024*i}')
        a('s_waitcnt lgkmcnt(0)')
        ty = [a(f'ds_read_b128 v[{64+4*i}:{67+4*i}], v199 offset:{1024*i}') for i in range(4)]
        a(f's_lshl_b32 s26, s30, 1\ns_add_u32 s26, s26, {YT}')
        for i, q in enumerate(qs):
            a(f's_add_u32 s3, s26, {1024*q}')
            a.wait(ty[i]); a(f'buffer_store_dwordx4 v[{64+4*i}:{67+4*i}], v{vXR}, s[8:11], s3 offen sc1')


def lane_roles(a, base):
    t2, q, mm, kap, oob, row, t = range(base, base + 7)
    a(f'v_lshrrev_b32 v{t2}, 4, v0\nv_bfe_u32 v{q}, v0, 2, 2\nv_and_b32 v{mm}, 3, v0')
    a(f's_lshl_b32 s26, s22, 2\nv_add_u32 v{kap}, s26, v{t2}\nv_cmp_gt_u32 vcc, 14, v{kap}\nv_mov_b32 v{oob}, {OOB}')
    return t2, q, mm, kap, oob, row, t


def xs_address(a, q, mm, kap, oob, t):
    a('s_mul_i32 s33, s20, 57344\ns_lshr_b32 s26, s21, 2\ns_mul_i32 s26, s26, 28672\ns_add_u32 s26, s26, s33\ns_and_b32 s3, s21, 3\ns_lshl_b32 s3, s3, 6\ns_add_u32 s26, s26, s3')
    a(f'v_lshlrev_b32 v{t}, 10, v{kap}\nv_lshl_add_u32 v{t}, v{q}, 8, v{t}\nv_lshl_add_u32 v{t}, v{mm}, 4, v{t}\nv_add_u32 v{t}, s26, v{t}\nv_cndmask_b32 v{vXS}, v{oob}, v{t}, vcc')


def ffn_addresses1(a, xs=False):
    t2, q, mm, kap, oob, row, t = lane_roles(a, 204)
    a('s_lshl_b32 s26, s20, 6\ns_lshl_b32 s3, s21, 3\ns_add_u32 s26, s26, s3')
    a(f'v_lshl_add_u32 v{row}, v{mm}, 1, s26\nv_mul_u32_u24 v{t}, 896, v{row}\nv_lshl_add_u32 v{t}, v{kap}, 6, v{t}\nv_lshl_add_u32 v{t}, v{q}, 4, v{t}')
    a(f'v_cndmask_b32 v{vQ}, v{oob}, v{t}, vcc\ns_mov_b64 s[16:17], vcc')
    a(f'v_lshlrev_b32 v{t}, 18, v{kap}\nv_lshl_add_u32 v{t}, v{q}, 16, v{t}\nv_lshl_add_u32 v{t}, v{row}, 2, v{t}\nv_cndmask_b32 v{vY}, v{oob}, v{t}, vcc')
    if xs: xs_address(a, q, mm, kap, oob, t)
    a(f's_lshl_b32 s26, s22, 2\ns_add_u32 s26, s26, {L_ST}\nv_lshlrev_b32 v{t}, 6, v{mm}\nv_lshl_add_u32 v{vST}, v{t2}, 4, v{t}\nv_add_u32 v{vST}, s26, v{vST}\nv_add_u32 v{vSR}, {L_ST}, v{t}')
    a(f'v_mov_b32 v{vEPS}, {f2u(1e-5)}\ns_mov_b32 s36, {f2u(1/448.)}')


def ffn_addresses2(a):
    a(f's_lshl_b32 s26, s21, 2\ns_add_u32 s26, s26, s22\ns_mul_i32 s26, s26, 150528\nv_add_u32 v{vW}, s26, v{vXR}\nv_add_u32 v{vW2}, 4096, v{vW}')
    for k in range(14): a(f's_mov_b32 s{60+k}, {WW + 7168*k}')


def ffn_addresses3(a):
    t2, q, mm, kap, oob, row, t = lane_roles(a, T0 + 48)
    xs_address(a, q, mm, kap, oob, t)
    a(f'v_add_u32 v{vXG}, s33, v{vXR}')
    a(f's_mul_i32 s33, s20, 458752\ns_mul_i32 s26, s21, 57344\ns_add_u32 s26, s26, s33\nv_and_b32 v{t}, 15, v0\nv_lshlrev_b32 v{t}, 4, v{t}\nv_lshl_add_u32 v{t}, v{kap}, 9, v{t}\nv_add_u32 v{t}, s26, v{t}\nv_cndmask_b32 v{vPR}, v{oob}, v{t}, vcc')
    a(f's_mul_i32 s3, s22, 14336\ns_add_u32 s26, s26, s3\nv_lshl_add_u32 v{vTP}, v0, 7, s26\nv_min_u32 v{vTQ}, 47, v0\ns_add_u32 s26, s26, 8192\nv_lshl_add_u32 v{vTQ}, v{vTQ}, 7, s26')
    a(f's_mul_i32 s26, s21, 7168\ns_add_u32 s26, s26, s33\ns_mul_i32 s3, s22, 1792\ns_add_u32 s26, s26, s3')
    a(f'v_mul_u32_u24 v{t}, 57344, v{q}\nv_lshl_add_u32 v{t}, v{t2}, 6, v{t}\nv_lshl_add_u32 v{t}, v{mm}, 4, v{t}\nv_add_u32 v{vP}, s26, v{t}')
    a(f'v_add_u32 v{vHB}, {L_H}, v{vXR}')
    for st in range(1, 4):
        a(f's_xor_b32 s26, s22, {st}\ns_lshl_b32 s26, s26, 10\nv_add_u32 v{vH1+st-1}, s26, v{vHB}')
    a(f's_lshl_b32 s26, s22, 10\nv_add_u32 v{vHa}, s26, v{vHB}')
    a(f's_lshr_b32 s26, s22, 1\ns_lshl_b32 s26, s26, 10\ns_and_b32 s3, s22, 1\ns_lshl_b32 s3, s3, 3\ns_add_u32 s26, s26, s3\ns_add_u32 s26, s26, 4096\nv_add_u32 v{vHb}, s26, v{vHB}')
    a(f's_lshl_b32 s26, s22, 2\ns_add_u32 s26, s26, 6144\nv_add_u32 v{vHc}, s26, v{vHB}')
    a(f's_mov_b32 s40, 0x3f80\ns_mov_b32 s41, 0x3f800000')


def q_and_touch(a, touch):
    a(f's_mov_b32 s4, s56\ns_mov_b32 s5, s57\ns_mov_b32 s6, {XBYTES}')
    tq = [a(f'buffer_load_dwordx4 v[{YP+4*e}:{YP+4*e+3}], v{vQ}, s[4:7], 0 offen offset:{896*e} nt') for e in range(2)]
    for e in range(2 if touch else 0):
        a(f's_mov_b32 s33, {XNL + 14336*e}\nbuffer_load_dword v{vD0}, v{vXS}, s[8:11], s33 offen sc1')
    return tq


def flag_touch(a):
    a(f's_lshl_b32 s26, s20, 8\ns_add_u32 s26, s26, {F_X0}\nv_mov_b32 v211, s26')
    for i, (base, sh) in enumerate(((F_P, 7), (F_P + 4096, 7), (F_X1, 7))):
        a(f's_lshl_b32 s26, s20, {sh}\ns_add_u32 s26, s26, {base}\nv_writelane_b32 v211, s26, {1+i}')
    a(f's_lshl_b32 s26, s24, 8\ns_add_u32 s26, s26, {FU_L}')
    for i in range(2):
        a(f'v_writelane_b32 v211, s26, {4+i}\ns_add_u32 s26, s26, 128')
    a(f'buffer_load_dword v{vD0}, v211, s[8:11], 0 offen sc1')


def code_prefetch(a):
    a('s_getpc_b64 s[4:5]\nL_pc:\ns_sub_u32 s4, s4, L_pc-' + NAME + '_kernel\ns_subb_u32 s5, s5, 0\ns_mov_b32 s6, L_code_end-' + NAME + '_kernel')
    a('s_lshl_b32 s26, s25, 11\ns_and_b32 s3, s22, 1\ns_lshl_b32 s3, s3, 10\ns_add_u32 s26, s26, s3\nv_and_b32 v212, 7, v0\nv_lshl_add_u32 v212, v212, 7, s26')
    a(f'buffer_load_dword v{vD0}, v212, s[4:7], 0 offen')


class WTask:
    WL = 224

    def __init__(self, a, nt, lds_base):
        self.a, self.nt = a, nt
        a(f's_and_b32 s48, s26, 3\ns_lshl_b32 s48, s48, 1\ns_and_b32 s3, s22, 1\ns_add_u32 s48, s48, s3\ns_lshr_b32 s50, s26, 2')
        a(f's_mul_i32 s59, s50, {8*3584}\ns_mul_i32 s3, s48, 448\ns_add_u32 s59, s59, s3')
        a(f's_lshl_b32 s32, s48, 9\ns_lshl_b32 s3, s50, 2\ns_add_u32 s32, s32, s3\ns_add_u32 s32, s32, {F_W + 4*(56 - 14)}')
        a(f's_mul_i32 s48, s48, {4*150528}\ns_lshr_b32 s3, s50, 2\ns_mul_i32 s3, s3, 7168\ns_add_u32 s48, s48, s3\ns_and_b32 s3, s50, 3\ns_lshl_b32 s3, s3, 8\ns_add_u32 s48, s48, s3\ns_add_u32 s48, s48, {WW}')
        a(f's_cmp_lt_u32 s26, 224\ns_cselect_b32 s59, s59, {OOB}\ns_cselect_b32 s48, s48, {OOB}\ns_cselect_b32 s32, s32, {OOB}\ns_add_u32 s49, s48, 4096')
        a(f's_mov_b32 s12, s44\ns_mov_b32 s13, s45\ns_mov_b32 s44, s46\ns_mov_b32 s45, s47\ns_mov_b32 s14, {448*3584}\ns_mov_b32 s46, s14\ns_mov_b32 s47, 0x20000')
        a('v_mul_u32_u24 v213, 2341, v0\nv_lshrrev_b32 v213, 16, v213\nv_mul_u32_u24 v214, 28, v213\nv_sub_u32 v214, v0, v214')
        a(f'v_mul_u32_u24 v222, 3584, v213\nv_lshl_add_u32 v222, v214, 4, v222\nv_mov_b32 v215, {OOB}\nv_cmp_gt_u32 vcc, 56, v0\nv_cndmask_b32 v222, v215, v222, vcc')
        a(lds_base)
        a(f'v_mul_u32_u24 v220, {W1P}, v213\nv_lshl_add_u32 v220, v214, 5, v220\nv_add_u32 v220, s3, v220')
        a(f'v_lshrrev_b32 v213, 4, v0\nv_bfe_u32 v214, v0, 2, 2\nv_mul_u32_u24 v221, {W1P}, v214\nv_mul_u32_u24 v214, 224, v213\nv_add_u32 v221, v221, v214')
        a(f'v_and_b32 v214, 3, v0\nv_lshl_add_u32 v221, v214, 3, v221\nv_add_u32 v221, s3, v221')
        a(f's_mov_b32 s3, 150528\nv_mul_lo_u32 v215, v213, s3\nv_and_b32 v214, 15, v0\nv_lshl_add_u32 v215, v214, 4, v215\nv_mov_b32 v223, {OOB}\nv_writelane_b32 v223, s32, 0')

    def loads(self):
        a, WL = self.a, self.WL
        self.tl = []
        for it in range(4):
            self.tl.append((a(f'buffer_load_dwordx4 v[{WL+8*it}:{WL+8*it+3}], v222, s[12:15], s59 offen {self.nt}'),
                            a(f'buffer_load_dwordx4 v[{WL+8*it+4}:{WL+8*it+7}], v222, s[44:47], s59 offen {self.nt}')))
            a(f's_add_u32 s59, s59, {2*3584}')

    def stage(self):
        a, WL = self.a, self.WL
        a('s_mov_b32 exec_hi, 0xffffff')
        for i in range(4):
            g, u = WL + 8 * i, WL + 8 * i + 4
            a.wait(*self.tl[i])
            a(f'ds_write2_b32 v220, v{g}, v{u} offset0:0 offset1:1\nds_write2_b32 v220, v{g+1}, v{u+1} offset0:2 offset1:3')
            a(f'ds_write2_b32 v220, v{g+2}, v{u+2} offset0:4 offset1:5\nds_write2_b32 v220, v{g+3}, v{u+3} offset0:6 offset1:7')
            if i < 3: a(f'v_add_u32 v220, {2*W1P}, v220')
        a('s_mov_b64 exec, -1')

    def transpose(self):
        a, WO = self.a, self.WL
        self.tr = []
        for j in range(7):
            a(f'ds_read_b64_tr_b16 v[{WO+4*j}:{WO+4*j+1}], v221 offset:{32*j}')
            self.tr.append(a(f'ds_read_b64_tr_b16 v[{WO+4*j+2}:{WO+4*j+3}], v221 offset:{32*j + 4*W1P}'))

    def store(self):
        a, WO = self.a, self.WL
        self.tws = []
        for j in range(7):
            a.wait(self.tr[j])
            self.tws.append(a(f'buffer_store_dwordx4 v[{WO+4*j}:{WO+4*j+3}], v215, s[8:11], {"s48" if j < 4 else "s49"} offen offset:{1024*(j & 3)} sc1'))


def make_tag(a):
    a(f's_mul_i32 s42, s43, 0x9E3779B1\ns_add_u32 s42, s42, 0x7F4A7C15\ns_and_b32 s42, s42, -16\ns_or_b32 s23, s23, s42\nv_mov_b32 v{vTAG}, s23')


def gen(a, opt):
    global GROUPS
    if opt.get('groups') == 2: GROUPS = [(0, 1, 2, 3), (4, 5, 6)]
    NT = opt.get('nt', 'nt') if opt.get('nt', 'nt') != 'none' else ''
    kernel_begin(a, NAME + '_kernel')
    a('s_cmp_ge_u32 s2, 256\ns_cbranch_scc1 L_end')
    stamp(a, opt, 'start')
    a('s_load_dwordx8 s[28:35], s[0:1], 8')
    a('s_load_dwordx2 s[8:9], s[0:1], 96')
    a('s_load_dwordx2 s[56:57], s[0:1], 0')
    a('s_load_dwordx2 s[38:39], s[0:1], 40')
    a('s_load_dwordx4 s[44:47], s[0:1], 56')
    a('s_load_dwordx4 s[52:55], s[0:1], 72')
    a('s_getreg_b32 s23, hwreg(HW_REG_XCC_ID, 0, 4)\ns_add_u32 s23, s23, 1')
    a(f'v_lshrrev_b32 v48, 6, v0\nv_mov_b32 v49, v0\nv_and_b32 v0, 63, v0\nv_readfirstlane_b32 s22, v48\nv_lshlrev_b32 v{vXR}, 4, v0')
    a('s_and_b32 s24, s2, 7\ns_lshr_b32 s25, s2, 3')
    a('s_lshl_b32 s20, s24, 2\ns_lshr_b32 s21, s2, 6\ns_add_u32 s20, s20, s21\ns_and_b32 s21, s25, 7')
    a(f's_mov_b32 s10, {WS_BYTES}\ns_mov_b32 s11, 0x20000\ns_mov_b32 s7, 0x20000\ns_mov_b32 s15, 0x20000\ns_mov_b32 s19, 0x20000')
    a('s_cmp_eq_u32 s24, 7\ns_cbranch_scc1 L_spare')
    a('v_and_b32 v50, 31, v0\nv_lshrrev_b32 v51, 5, v49')
    a('s_lshl_b32 s26, s25, 6\nv_lshl_add_u32 v52, v51, 3, s26')
    a('s_lshl_b32 s26, s24, 7\nv_lshl_add_u32 v53, v50, 2, s26')
    a('v_mul_u32_u24 v54, 896, v52\nv_add_u32 v54, v54, v53')
    a(f'v_subrev_u32 v55, 2688, v54\nv_mov_b32 v56, {OOB}\nv_cmp_eq_u32 vcc, 0, v52\nv_lshlrev_b32 v57, 2, v53\nv_cndmask_b32 v55, v55, v56, vcc')
    a('s_movk_i32 s26, 4480')
    a(f's_mov_b32 s14, {XBYTES}\ns_mov_b32 s18, {XBYTES}\ns_movk_i32 s6, 3584')
    a('s_waitcnt lgkmcnt(0)')
    stamp(a, opt, 'ka')
    a('s_mov_b32 s12, s28\ns_mov_b32 s13, s29\ns_mov_b32 s16, s30\ns_mov_b32 s17, s31\ns_mov_b32 s4, s32\ns_mov_b32 s5, s33')
    K0, V0, SH = 64, 76, 60
    tk = []
    for j in range(3):
        tk.append(a(f'buffer_load_dword v{K0+j}, v55, s[12:15], 0 offen offset:{896*j} {NT}'))
    for j in range(8):
        so, off = ('0', 896 * j) if j < 5 else ('s26', 896 * (j - 5))
        tk.append(a(f'buffer_load_dword v{K0+3+j}, v54, s[12:15], {so} offen offset:{off} {NT}'))
    tw = a(f'buffer_load_dwordx4 v[{SH}:{SH+3}], v57, s[4:7], 0 offen')
    tv = []
    for j in range(8):
        so, off = ('0', 896 * j) if j < 5 else ('s26', 896 * (j - 5))
        tv.append(a(f'buffer_load_dword v{V0+j}, v54, s[16:19], {so} offen offset:{off} {NT}'))
    stamp(a, opt, 'kvi')
    a('s_load_dword s43, s[8:9], 0x0')
    a('s_lshl_b32 s26, s24, 5\ns_add_u32 s26, s26, s25\ns_lshl_b32 s26, s26, 2\ns_load_dword s58, s[38:39], s26')
    a('s_and_b32 s51, s22, 1\ns_lshr_b32 s27, s22, 1')
    a('s_lshl_b32 s30, s24, 5\ns_add_u32 s30, s30, s25\ns_lshl_b32 s30, s30, 1\ns_add_u32 s30, s30, s51\ns_lshl_b32 s30, s30, 12')
    a(f's_mul_i32 s28, s51, {KC_UP}\ns_mul_i32 s29, s51, {KC_HP}\ns_add_u32 s29, s29, {KC_H + 256}')
    a(f's_lshl_b32 s37, s24, 18\ns_lshl_b32 s3, s25, 7\ns_sub_u32 s37, s37, s3\ns_add_u32 s37, s37, {4096 - 128}\ns_lshl_b32 s3, s51, 17\ns_add_u32 s37, s37, s3')
    vA, vB, vC3, vL15, vL4 = 192, 193, 194, 195, 196

    def kv_compute():
        WT, KF, VF, UF = 88, 96, 118, 120
        a.wait(tw)
        stamp(a, opt, 'kv')
        for tau in range(4):
            for c in range(2):
                src = SH + 2 * c + (tau >> 1)
                a(f'v_lshlrev_b32 v{WT+2*tau+c}, 16, v{src}' if tau % 2 == 0 else f'v_and_b32 v{WT+2*tau+c}, 0xffff0000, v{src}')
        for j in range(11):
            a(f'v_lshlrev_b32 v{KF+2*j}, 16, v{K0+j}\nv_and_b32 v{KF+2*j+1}, 0xffff0000, v{K0+j}')
        for j in range(8):
            u = UF + 2 * j
            a(f'v_pk_mul_f32 v[{u}:{u+1}], v[{KF+2*(j+3)}:{KF+2*(j+3)+1}], v[{WT}:{WT+1}]')
            for tau in range(1, 4):
                a(f'v_pk_fma_f32 v[{u}:{u+1}], v[{KF+2*(j+3-tau)}:{KF+2*(j+3-tau)+1}], v[{WT+2*tau}:{WT+2*tau+1}], v[{u}:{u+1}]')
        for j in range(8):
            u = UF + 2 * j
            a.wait(tv[j])
            a(f'v_lshlrev_b32 v{VF}, 16, v{V0+j}\nv_and_b32 v{VF+1}, 0xffff0000, v{V0+j}')
            a(f'v_pk_mul_f32 v[{u}:{u+1}], v[{u}:{u+1}], v[{VF}:{VF+1}]')
        for c in range(2):
            for n in range(4):
                a(f'v_cvt_pk_bf16_f32 v{64+4*c+n}, v{UF+2*(7-2*n)+c}, v{UF+2*(6-2*n)+c}')
        a('ds_write_b128 v59, v[64:67]\nds_write_b128 v59, v[68:71] offset:144')
        a('s_waitcnt lgkmcnt(0)\ns_barrier')
        stamp(a, opt, 'kv2')

    def conv_addresses():
        def copybase(dst, c):
            a(f's_mov_b32 s26, {sum(DELTA[i] << (4*i) for i in range(8))}\nv_lshlrev_b32 v199, 2, v{c}\nv_lshrrev_b32 v199, v199, s26\nv_and_b32 v199, 15, v199')
            a(f'v_mul_u32_u24 v{dst}, 4352, v{c}\nv_lshl_add_u32 v{dst}, v199, 4, v{dst}\nv_add_u32 v{dst}, s29, v{dst}')
        a('v_and_b32 v198, 7, v0'); copybase(vC3, 198)
        a(f'v_and_b32 v{vL15}, 15, v0\nv_add_u32 v197, 1, v{vL15}\nv_and_b32 v198, 7, v197'); copybase(vA, 198)
        a(f'v_lshrrev_b32 v197, 3, v197\nv_lshrrev_b32 v{vL4}, 4, v0\nv_add_u32 v197, v197, v{vL4}\nv_lshl_add_u32 v{vA}, v197, 4, v{vA}\nv_subrev_u32 v{vA}, 32, v{vA}')
        a(f'v_lshlrev_b32 v{vB}, 4, v{vL4}\nv_lshlrev_b32 v197, 5, v{vL15}\nv_sub_u32 v{vB}, v{vB}, v197\ns_add_u32 s26, s28, 480\nv_add_u32 v{vB}, s26, v{vB}')

    def d_value():
        a('s_cmp_eq_u32 s51, 0\ns_cselect_b32 s26, 16, 0\ns_lshl_b32 s58, s58, s26\ns_and_b32 s58, s58, 0xffff0000')

    a(f'v_mul_u32_u24 v59, 288, v50\nv_lshlrev_b32 v58, 4, v51\nv_sub_u32 v59, v59, v58\nv_add_u32 v59, {L_UB + 112}, v59')
    a('s_cmp_eq_u32 s27, 0\ns_cbranch_scc0 L_hw')
    snap = a.snapshot()
    a('s_lshl_b32 s26, s24, 5\ns_add_u32 s26, s26, s25\ns_lshr_b32 s50, s26, 4\ns_and_b32 s48, s26, 15\ns_lshl_b32 s48, s48, 1\ns_add_u32 s48, s48, s51')
    a(f's_mul_i32 s59, s50, {8*3584}\ns_mul_i32 s3, s48, 112\ns_add_u32 s59, s59, s3')
    a(f's_mov_b32 s12, s44\ns_mov_b32 s13, s45\ns_mov_b32 s44, s46\ns_mov_b32 s45, s47\ns_mov_b32 s14, {448*3584}\ns_mov_b32 s46, s14\ns_mov_b32 s47, 0x20000')
    a('v_mul_u32_u24 v213, 9363, v0\nv_lshrrev_b32 v213, 16, v213\nv_mul_u32_u24 v214, 7, v213\nv_sub_u32 v214, v0, v214')
    a('v_mul_u32_u24 v222, 3584, v213\nv_lshl_add_u32 v222, v214, 4, v222\nv_cmp_gt_u32 vcc, 56, v0\nv_cndmask_b32 v222, v56, v222, vcc')
    a(f'buffer_load_dwordx4 v[240:243], v222, s[12:15], s59 offen')
    tA = a(f'buffer_load_dwordx4 v[244:247], v222, s[44:47], s59 offen')
    a('v_lshrrev_b32 v140, 3, v0\nv_and_b32 v142, 7, v0\nv_lshlrev_b32 v142, 4, v142\nv_lshl_add_u32 v141, v140, 12, v142')
    a(f'v_mul_u32_u24 v140, 144, v140\nv_add_u32 v140, v140, v142\ns_mul_i32 s26, s51, {32*144}\ns_add_u32 s26, s26, {L_UB}\nv_add_u32 v140, s26, v140')
    stamp(a, opt, 'early')
    kv_compute()
    UO = 224
    tb = [a(f'ds_read_b128 v[{UO+4*i}:{UO+4*i+3}], v140 offset:{8*144*i}') for i in range(4)]
    make_tag(a)
    def tile_out(base, mod):
        a(f's_add_u32 s26, s37, {base}')
        for i in range(4):
            a.wait(tb[i]); a(f'buffer_store_dwordx4 v[{UO+4*i}:{UO+4*i+3}], v141, s[8:11], s26 offen {mod}')
            if i < 3: a('s_add_u32 s26, s26, 0x8000')
    tile_out(UR, '')
    stamp(a, opt, 'ust')
    d_value()
    conv_addresses()
    a(f's_lshl_b32 s26, s24, 8\ns_lshl_b32 s3, s25, 3\ns_add_u32 s3, s3, s26\ns_lshl_b32 s33, s51, 2\ns_add_u32 s3, s3, s33\nv_mov_b32 v{vFW}, s3\nv_lshl_add_u32 v{vFR}, v0, 2, s26')
    a('v_mov_b32 v200, 0\nv_mov_b32 v201, 0\nv_mov_b32 v202, 0\nv_mov_b32 v203, 0')
    a(f'v_subrev_u32 v197, 32, v{vC3}\nv_bfe_u32 v198, v0, 3, 1\nv_lshl_add_u32 v197, v198, 4, v197')
    a(f's_add_u32 s26, s28, 4096\nv_add_u32 v198, s26, v{vXR}\nv_cmp_gt_u32 vcc, 32, v0\nv_cndmask_b32 v197, v197, v198, vcc')
    a('s_mov_b32 exec_lo, 0x3fffffff\ns_mov_b32 exec_hi, 0x1ff\nds_write_b128 v197, v[200:203]\ns_mov_b64 exec, -1')
    a(f's_mul_i32 s3, s51, 2048\ns_add_u32 s3, s3, {L_WA}')
    a(f'v_mul_u32_u24 v220, 240, v213\nv_lshl_add_u32 v220, v214, 5, v220\nv_add_u32 v220, s3, v220')
    a(f'v_lshrrev_b32 v213, 4, v0\nv_bfe_u32 v214, v0, 2, 2\nv_mul_u32_u24 v221, 240, v214\nv_lshl_add_u32 v221, v213, 5, v221')
    a(f'v_and_b32 v214, 3, v0\nv_lshl_add_u32 v221, v214, 3, v221\nv_add_u32 v221, s3, v221')
    a(f'v_and_b32 v214, 15, v0\nv_lshlrev_b32 v214, 4, v214\nv_lshl_add_u32 v215, v213, 10, v214\nv_add_u32 v222, 4096, v215\nv_cmp_gt_u32 vcc, 48, v0\nv_cndmask_b32 v222, v56, v222, vcc')
    a(f's_lshr_b32 s32, s48, 2\ns_lshl_b32 s32, s32, 9\ns_and_b32 s3, s48, 3\ns_lshl_b32 s3, s3, 2\ns_add_u32 s32, s32, s3\ns_lshl_b32 s3, s50, 4\ns_add_u32 s32, s32, s3\ns_add_u32 s32, s32, {F_W}\nv_mov_b32 v223, s32')
    a(f's_mul_i32 s48, s48, 150528\ns_lshr_b32 s3, s50, 2\ns_mul_i32 s3, s3, 7168\ns_add_u32 s48, s48, s3\ns_and_b32 s3, s50, 3\ns_lshl_b32 s3, s3, 8\ns_add_u32 s48, s48, s3\ns_add_u32 s48, s48, {WW}')
    a(f's_mov_b32 s33, {FU_L}\ns_waitcnt vmcnt(0)')
    flag_store(a, vFW, 's33', '')
    stamp(a, opt, 'uflag')
    a('s_mov_b32 exec_hi, 0xffffff')
    for i in range(4): a(f'ds_write2_b32 v220, v{240+i}, v{244+i} offset0:{2*i} offset1:{2*i+1}')
    a('s_mov_b64 exec, -1')
    for i in range(2):
        a(f'ds_read_b64_tr_b16 v[{248+4*i}:{249+4*i}], v221 offset:{128*i}\nds_read_b64_tr_b16 v[{250+4*i}:{251+4*i}], v221 offset:{128*i + 960}')
    ffn_addresses1(a)
    L = 'L_pu'
    a(f's_mov_b32 s34, 0\ns_mov_b32 s35, {UR}\ns_lshl_b32 s18, s24, 15\ns_add_u32 s18, s18, {UR}')
    a(f'{L}:')
    a(f's_mov_b32 s33, {FU_L}\nbuffer_load_dword v78, v{vFR}, s[8:11], s33 offen sc1')
    a('s_waitcnt vmcnt(0)')
    a(f'v_cmp_ne_u32 vcc, s23, v78\ns_cbranch_vccz {L}_x')
    a(f's_add_u32 s34, s34, 1\ns_cmp_lt_u32 s34, 24\ns_cbranch_scc1 {L}')
    a(f's_cmp_eq_u32 s34, 24\ns_cbranch_scc0 {L}_n')
    tile_out(URG, 'sc1')
    a(f's_mov_b32 s33, {FU_G}\ns_waitcnt vmcnt(0)')
    flag_store(a, vFW, 's33', 'sc1')
    a(f'{L}_n:')
    a(f's_cmp_gt_u32 s34, {SPIN}\ns_cbranch_scc1 {L}_x')
    a(f's_mov_b32 s33, {FU_G}\nbuffer_load_dword v78, v{vFR}, s[8:11], s33 offen sc1')
    a('s_waitcnt vmcnt(0)\nv_and_b32 v79, -16, v78')
    a(f'v_cmp_ne_u32 vcc, s42, v79\ns_cbranch_vccnz {L}')
    a(f's_mov_b32 s35, {URG}\nv_cmp_ne_u32 vcc, s23, v78\ns_cbranch_vccz {L}_x\ns_mov_b32 s18, {XNL}')
    a(f'{L}_x:')
    a('s_waitcnt vmcnt(0)')
    stamp(a, opt, 'upoll')
    a('s_add_u32 s3, s30, s35\ns_mov_b32 s26, s28')
    for i in range(4):
        a('s_mov_b32 m0, s26\ns_add_u32 s26, s26, 1024')
        tud = a(f'buffer_load_dwordx4 v{vXR}, s[8:11], s3 offen sc1 lds\ns_add_u32 s3, s3, 1024')
    a(f'v_mov_b32 v78, s18\nv_mov_b32 v79, {L_LOC}\nds_write_b32 v79, v78')
    a.wait(tud)
    stamp(a, opt, 'hcp')
    a('s_waitcnt lgkmcnt(0)\ns_barrier')
    a('buffer_store_dwordx4 v[248:251], v215, s[8:11], s48 offen sc1')
    tAs = a('buffer_store_dwordx4 v[252:255], v222, s[8:11], s48 offen sc1')
    q_and_touch(a, False)
    stamp(a, opt, 'cstart')
    def hookU(it):
        if it == opt.get('aflag', 5):
            a.wait(tAs); flag_store(a, 223, '0', 'sc1')
    conv_phase(a, opt, 0, hookU)
    a(f'v_mov_b32 v223, {OOB}')
    a('s_waitcnt vmcnt(4)')
    stamp(a, opt, 'wst')
    stamp(a, opt, 'yst')
    a('s_branch L_join')
    a('L_hw:'); a.restore(snap)
    code_prefetch(a)
    a(f's_mov_b32 s4, s34\ns_mov_b32 s5, s35\ns_mov_b32 s6, {448*4096}')
    a(f'v_add_u32 v140, s30, v{vXR}\nv_subrev_u32 v141, 16, v140\nv_cmp_eq_u32 vcc, 0, v0\nv_cndmask_b32 v142, v141, v56, vcc')
    HL = 144
    th = []
    a(f's_add_u32 s26, s37, {UR}\nv_and_b32 v143, 31, v0\nv_lshlrev_b32 v143, 12, v143\nbuffer_load_dword v{vD1}, v143, s[8:11], s26 offen sc1')
    for st in range(4):
        a(f'buffer_load_dwordx4 v[{HL+8*st}:{HL+8*st+3}], v{142 if st == 0 else 141}, s[4:7], 0 offen offset:{1024*st} {NT}')
        th.append(a(f'buffer_load_dwordx4 v[{HL+8*st+4}:{HL+8*st+7}], v140, s[4:7], 0 offen offset:{1024*st} {NT}'))
    flag_touch(a)
    conv_addresses()
    stamp(a, opt, 'early')
    kv_compute()
    make_tag(a)
    d_value()
    a(f'v_add_u32 v140, s29, v{vXR}')
    for st in range(4):
        d = HL + 8 * st; e = 88; o = 96
        a.wait(th[st])
        cb = lambda c: c * 4352 + 16 * DELTA[c] + 1024 * st - (16 if c else 0)
        a(f'ds_write_b128 v140, v[{d+4}:{d+7}] offset:{cb(0)}')
        for i in range(1, 4): a(f'v_mov_b32 v{o+i-1}, v{d+i}')
        a(f'ds_write_b128 v140, v[{d+2}:{d+5}] offset:{cb(4)}')
        for i in range(4, 7): a(f'v_mov_b32 v{o+i-1}, v{d+i}')
        a(f'ds_write_b128 v140, v[{o}:{o+3}] offset:{cb(2)}')
        for i in range(3): a(f'v_alignbit_b32 v{e+i}, v{d+i+1}, v{d+i}, 16')
        a(f'ds_write_b128 v140, v[{o+2}:{o+5}] offset:{cb(6)}')
        for i in range(3, 6): a(f'v_alignbit_b32 v{e+i}, v{d+i+1}, v{d+i}, 16')
        a(f'ds_write_b128 v140, v[{e}:{e+3}] offset:{cb(1)}')
        for i in range(1, 4): a(f'v_alignbit_b32 v{o+8+i-1}, v{d+i+1}, v{d+i}, 16')
        a(f'ds_write_b128 v140, v[{e+2}:{e+5}] offset:{cb(5)}')
        for i in range(4, 7): a(f'v_alignbit_b32 v{o+8+i-1}, v{d+i+1}, v{d+i}, 16')
        a(f'ds_write_b128 v140, v[{o+8}:{o+11}] offset:{cb(3)}')
        a(f'ds_write_b128 v140, v[{o+10}:{o+13}] offset:{cb(7)}')
    stamp(a, opt, 'ust')
    a('s_waitcnt lgkmcnt(0)')
    stamp(a, opt, 'uflag'); stamp(a, opt, 'upoll'); stamp(a, opt, 'hcp')
    a('s_barrier')
    stamp(a, opt, 'cstart')
    WP = opt.get('wproc', 8)
    box = {}
    def hook(it):
        if it == 0:
            a('s_lshl_b32 s26, s24, 5\ns_add_u32 s26, s26, s25\ns_add_u32 s26, s26, 56')
            box['W'] = WTask(a, NT, f's_mul_i32 s3, s51, {8*W1P}\ns_add_u32 s3, s3, {L_WS}')
            box['W'].loads()
        if it == 1:
            ffn_addresses1(a)
            box['q'] = q_and_touch(a, False)
            a(f'v_mov_b32 v204, {L_LOC}')
            box['l'] = a('ds_read_b32 v204, v204')
        if it == 2:
            a.wait(box['l'])
            a('v_readfirstlane_b32 s18, v204')
        if it == WP: box['W'].stage()
        if it == WP + 1: box['W'].transpose()
        if it == WP + 2: box['W'].store()
    conv_phase(a, opt, 1, hook)
    for it in range(8, WP + 3): hook(it)
    a.wait(box['q'][-1])
    stamp(a, opt, 'wst')
    stamp(a, opt, 'yst')
    a('s_branch L_join')
    a('L_spare:')
    a.reset_counters()
    a('s_waitcnt lgkmcnt(0)')
    a('s_load_dword s43, s[8:9], 0x0')
    a(f's_mov_b32 s4, s52\ns_mov_b32 s5, s53\ns_mov_b32 s6, {1792*896}')
    a('v_lshrrev_b32 v72, 4, v0\nv_lshlrev_b32 v72, 1, v72\nv_bfe_u32 v73, v0, 2, 1\nv_add_u32 v72, v72, v73\nv_bfe_u32 v73, v0, 3, 1\nv_lshl_add_u32 v72, v73, 3, v72')
    a('v_mul_u32_u24 v72, 896, v72\nv_and_b32 v73, 3, v0\nv_lshl_add_u32 v72, v73, 4, v72')
    for rep in range(2):
        a(f's_add_u32 s26, s25, {32*rep}\ns_and_b32 s{38+12*rep}, s26, 7\ns_lshr_b32 s{39+12*rep}, s26, 3')
        k2 = f's{39+12*rep}'; sl = f's{38+12*rep}'
        a(f's_mul_i32 s28, {k2}, 7\ns_add_u32 s28, s28, s22')
        a(f's_sub_u32 s29, {k2}, 4\ns_lshl_b32 s29, s29, 1\ns_lshr_b32 s30, s22, 1\ns_add_u32 s29, s29, s30\ns_mul_i32 s29, s29, 7')
        a('s_and_b32 s30, s22, 1\ns_add_u32 s29, s29, s30\ns_add_u32 s29, s29, 4')
        a(f's_cmp_lt_u32 {k2}, 4\ns_cselect_b32 s28, s28, s29')
        a(f's_mul_i32 s29, s22, 7\ns_add_u32 s29, s29, 6\ns_cmp_ge_u32 {k2}, 6\ns_cselect_b32 s28, s29, s28')
        a(f's_mul_i32 s29, {sl}, 28\ns_add_u32 s28, s28, s29\ns_mul_i32 s28, s28, 7168')
        a(f's_mul_i32 s29, s22, 7168\ns_add_u32 s29, s29, {28672*rep}')
        for i in range(7):
            a('s_mov_b32 m0, s29\ns_add_u32 s29, s29, 1024')
            tdm = a(f'buffer_load_dwordx4 v{vXR}, s[4:7], s28 offen {NT} lds\ns_add_u32 s28, s28, 1024')
    ffn_addresses1(a, True)
    flag_touch(a)
    q_and_touch(a, True)
    a(f's_mov_b32 s18, {XNL}')
    a.wait(tdm)
    a('s_waitcnt lgkmcnt(0)\ns_barrier')
    make_tag(a)
    for rep in range(2):
        k2 = f's{39+12*rep}'; sl = f's{38+12*rep}'
        a(f's_xor_b32 s35, {k2}, s22\ns_cmp_lt_u32 {k2}, 4\ns_cselect_b32 s35, s35, {k2}')
        a(f's_lshl_b32 s28, {sl}, 2\ns_add_u32 s28, s28, s22\ns_mul_i32 s28, s28, 150528\ns_add_u32 s28, s28, {WW + 98*1024}')
        a(f's_cmp_ge_u32 {k2}, 7\ns_cselect_b32 s28, {OOB}, s28\ns_mul_i32 s29, s22, 7')
        tr = []
        for j in range(7):
            a(f's_add_u32 s26, s29, {j}\ns_lshr_b32 s3, s26, 1\ns_lshl_b32 s3, s3, 6\ns_and_b32 s26, s26, 1\ns_lshl_b32 s26, s26, 3\ns_add_u32 s26, s26, s3\ns_add_u32 s26, s26, {28672*rep}')
            a(f'v_add_u32 v73, s26, v72')
            o = 80 + 28 * rep + 4 * j
            a(f'ds_read_b64_tr_b16 v[{o}:{o+1}], v73')
            tr.append(a(f'ds_read_b64_tr_b16 v[{o+2}:{o+3}], v73 offset:14336'))
        for j in range(7):
            g = [g for g in GROUPS if j in g][0]
            o = 80 + 28 * rep + 4 * j
            a(f's_mul_i32 s26, s35, {1024*len(g)}\ns_add_u32 s26, s26, s28\ns_add_u32 s26, s26, {1024*g2pos(j, 0)}')
            a.wait(tr[j])
            a(f'buffer_store_dwordx4 v[{o}:{o+3}], v{vXR}, s[8:11], s26 offen sc1')
    a(f'v_mov_b32 v223, {OOB}')
    for rep in range(2):
        k2 = f's{39+12*rep}'; sl = f's{38+12*rep}'
        a(f's_lshl_b32 s26, {sl}, 9\ns_lshl_b32 s3, {k2}, 4\ns_add_u32 s26, s26, s3\ns_lshl_b32 s3, s22, 2\ns_add_u32 s26, s26, s3\ns_add_u32 s26, s26, {F_W + 4*98}')
        a(f's_cmp_ge_u32 {k2}, 7\ns_cselect_b32 s26, {OOB}, s26\nv_writelane_b32 v223, s26, {rep}')
    a('s_waitcnt vmcnt(14)')
    if opt.get('stamps'):
        for n in list(STN[1:]): stamp(a, opt, n)
    a('L_join:')
    a.vm_done = a.vm_issued
    a(f's_lshl_b32 s26, s21, 9\ns_add_u32 s26, s26, {F_W}\ns_lshl_b32 s3, s22, 2\ns_add_u32 s3, s3, s26\nv_min_u32 v220, 11, v0\nv_lshl_add_u32 v220, v220, 4, s3')
    twa = a('buffer_load_dword v222, v220, s[8:11], 0 offen sc1')
    a('v_min_u32 v221, 41, v0\nv_lshl_add_u32 v221, v221, 2, s26\nv_add_u32 v221, 224, v221\ns_add_u32 s3, s3, 192\nv_writelane_b32 v221, s3, 62\ns_add_u32 s3, s3, 16\nv_writelane_b32 v221, s3, 63')
    for e in range(2):
        for i in range(4):
            a(f'v_lshlrev_b32 v{X+8*e+2*i}, 16, v{YP+4*e+i}\nv_and_b32 v{X+8*e+2*i+1}, 0xffff0000, v{YP+4*e+i}')
    stats(a, 0)
    norm_to(a, Z)
    stamp(a, opt, 'lnq')
    a(f's_mov_b32 s52, s54\ns_mov_b32 s53, s55\ns_mov_b32 s54, {XBYTES}\ns_mov_b32 s55, 0x20000')
    a(f's_lshl_b32 s26, s21, 4\ns_lshl_b32 s3, s22, 2\ns_add_u32 s26, s26, s3\ns_lshl_b32 s3, s20, 8\ns_add_u32 s26, s26, s3\nv_mov_b32 v{vFW}, s26\nv_lshl_add_u32 v{vFR}, v0, 2, s3')
    S = Stream(a)
    def settle(tok, vres, vaddr, name):
        a.wait(tok)
        a(f'v_and_b32 v{vres}, -16, v{vres}\nv_cmp_ne_u32 vcc, s42, v{vres}\ns_cbranch_vccz L_{name}_ok')
        sn = a.snapshot()
        poll_masked(a, vaddr, '0', name)
        a.restore(sn)
        a(f'L_{name}_ok:')
    YL = T0 + 32
    def yloads():
        for i in range(8):
            a(f's_mov_b32 s33, {YT + 8192*i}')
            t = a(f'buffer_load_dwordx2 v[{YL+2*i}:{YL+2*i+1}], v{vY}, s[8:11], s33 offen sc1')
        return t
    def ycheck(target, taken):
        a(f'v_xor_b32 v{vPL}, s42, v{YL+1}\nv_xor_b32 v{vD0}, s42, v{YL+3}')
        for i in range(2, 8):
            r = vPL if i % 2 == 0 else vD0
            a(f'v_bitop3_b32 v{r}, v{YL+2*i+1}, s42, v{r} bitop3:0xbe')
        a(f'v_or_b32 v{vPL}, v{vPL}, v{vD0}\nv_cmp_ne_u32 vcc, 0, v{vPL}\ns_and_b64 vcc, vcc, s[16:17]\ns_cbranch_scc{taken} {target}')
    ty = yloads()
    ffn_addresses2(a)
    settle(twa, 222, 220, 'wa')
    stamp(a, opt, 'wpa')
    S.prefetch(opt.get('nA', 6))
    ffn_addresses3(a)
    a.wait(ty)
    ycheck('L_py_x', 0)
    sn = a.snapshot()
    a('s_mov_b32 s34, 0\nL_py:')
    yloads()
    a(f's_add_u32 s34, s34, 1\ns_cmp_gt_u32 s34, {SPIN}\ns_cbranch_scc1 L_py_t\ns_waitcnt vmcnt(0)')
    ycheck('L_py', 1)
    a('L_py_t:\ns_waitcnt vmcnt(0)')
    a.restore(sn)
    a('L_py_x:')
    for i in range(8): a(f'v_mov_b32 v{YP+i}, v{YL+2*i}')
    a(f's_mov_b64 exec, 3\nbuffer_store_dword v{vTAG}, v223, s[8:11], 0 offen sc1\ns_mov_b64 exec, -1')
    stamp(a, opt, 'y')
    S.win = None
    S.prefetch(opt.get('nB', 8))
    unpack_y(a)
    gate_and_norm(a, 1, lambda e: a(f's_add_u32 s33, s18, {14336*e}\nbuffer_store_dwordx4 v[{XO+4*e}:{XO+4*e+3}], v{vXS}, s[8:11], s33 offen'))
    a(f's_mov_b32 s33, {F_X0}\ns_waitcnt vmcnt(0)')
    flag_store(a, vFW, 's33', '')
    stamp(a, opt, 'E0')
    S.prefetch(opt.get('nC', 4))
    L = 'L_px'
    a(f's_mov_b32 s34, 0\ns_mov_b32 s35, s18\ns_mov_b32 s37, 0')
    a(f'{L}:')
    a(f's_mov_b32 s33, {F_X0}\nbuffer_load_dword v{vPL}, v{vFR}, s[8:11], s33 offen sc1')
    a('s_waitcnt vmcnt(0)')
    a(f'v_cmp_eq_u32 vcc, s23, v{vPL}\nv_and_b32 v{vPL}, -16, v{vPL}\nv_cmp_eq_u32 s[28:29], s42, v{vPL}\ns_cmp_eq_u32 vcc_lo, -1\ns_cbranch_scc1 {L}_x')
    a(f's_add_u32 s34, s34, 1\ns_cmp_eq_u32 s34, 24\ns_cbranch_scc0 {L}_n')
    for e in range(2):
        a(f's_mov_b32 s33, {XNG1 + 14336*e}\nbuffer_store_dwordx4 v[{XO+4*e}:{XO+4*e+3}], v{vXS}, s[8:11], s33 offen sc1')
    a(f's_mov_b32 s33, {F_X0}\ns_waitcnt vmcnt(0)')
    flag_store(a, vFW, 's33', 'sc1', off=128)
    a(f'{L}_n:')
    a(f's_cmp_gt_u32 s34, {SPIN}\ns_cbranch_scc1 {L}_x')
    a(f's_cmp_eq_u32 s29, -1\ns_cbranch_scc0 {L}')
    a(f's_mov_b32 s35, {XNG1}\ns_cmp_eq_u32 vcc_hi, -1\ns_cselect_b32 s37, 0, 1')
    a(f'{L}_x:')
    a.vm_done = a.vm_issued - 1
    stamp(a, opt, 'px0')
    G0 = opt.get('g0', 4)
    S.win = None
    tw_ = a(f'buffer_load_dword v222, v221, s[8:11], 0 offen sc1')
    a(f's_lshl_b32 s59, s21, 9\ns_add_u32 s59, s59, {F_W + 4*98}')
    tg = gather_xn(a)
    S.prefetch(20 - opt.get('nA', 6) - opt.get('nB', 8) - opt.get('nC', 4))
    assert max(p for (_, p) in S.tok) < 21
    a(f's_lshl_b32 s26, s20, 7\nv_subrev_u32 v{vFW}, s26, v{vFW}\nv_and_b32 v{vFR}, 31, v0\nv_lshl_add_u32 v{vFR}, v{vFR}, 2, s26')
    a.wait(tg[G0 - 1])
    settle(tw_, 222, 221, 'wb')
    a('v_min_u32 v221, 27, v0\nv_lshl_add_u32 v221, v221, 2, s59')
    stamp(a, opt, 'wpoll')
    a('s_barrier')
    stamp(a, opt, 'gath0')
    a('s_cmp_eq_u32 s37, 0\ns_cbranch_scc0 L_global')
    snap = a.snapshot(); sst = S.state(); tg0 = tg
    for mode in 'LG':
        if mode == 'G':
            a('L_end:\ns_endpgm\nL_code_end:\nL_global:'); a.restore(snap); S.set_state(sst)
        loc = mode == 'L'
        fm = '' if loc else 'sc1'
        tg = tg0
        for layer in range(2):
            pbase = PB1 if (loc or layer == 0) else PB2
            pmod = opt.get(f'p{layer}mod', '' if layer == 0 else 'nt').replace('_', ' ').replace('plain', '') if loc else 'sc1'
            touch = opt.get(f'touch{layer}', 'none' if layer == 0 else 'sc1').replace('_', ' ').replace('plain', '') if loc else 'none'
            ffn(a, S, opt, layer, tg, pbase, pmod, None if touch == 'none' else touch, settle, mode)
            a(f's_mov_b32 s33, {F_P + 4096*layer}\ns_waitcnt vmcnt(0)')
            stamp(a, opt, f'drain{layer}')
            flag_store(a, vFW, 's33', fm)
            if layer == 0: unpack_y(a)
            poll_masked(a, vFR, 's33', 'pp')
            stamp(a, opt, f'pp{layer}')
            toks = []
            for sidx in range(8):
                a(f's_mov_b32 s33, {pbase + 7168*sidx}')
                for e in range(2):
                    r = T0 + 8 * sidx + 4 * e
                    toks.append(a(f'buffer_load_dwordx4 v[{r}:{r+3}], v{vPR}, s[8:11], s33 offen offset:{256*e} {opt.get(f"pld{layer}", "nt" if layer == 0 else "sc1").replace("_", " ") if loc else "sc1"}'))
            for sidx in range(8):
                for e in range(2):
                    r = T0 + 8 * sidx + 4 * e
                    a.wait(toks[2 * sidx + e])
                    for i in range(4):
                        x = X + 8 * (i >> 1) + 4 * e + 2 * (i & 1)
                        a(f'v_dot2_f32_bf16 v{x}, v{r+i}, s40, v{x}\nv_dot2_f32_bf16 v{x+1}, v{r+i}, s41, v{x+1}')
            if layer == 1: break
            stamp(a, opt, 'red0')
            if opt.get('ringg2', 1) == 2:
                S.win = None
                for p in STR[:NR]: S.issue(1, p)
            stats(a, 2)
            norm_to(a, Z)
            xn2 = 's18' if loc else XNG2
            a(f's_mov_b32 s35, {xn2}')
            gate_and_norm(a, 3, lambda e: a(f's_add_u32 s33, s35, {14336*e}\nbuffer_store_dwordx4 v[{XO+4*e}:{XO+4*e+3}], v{vXS}, s[8:11], s33 offen {fm}'))
            a(f's_mov_b32 s33, {F_X1}\ns_waitcnt vmcnt(0)')
            flag_store(a, vFW, 's33', fm)
            stamp(a, opt, 'E1')
            poll_masked(a, vFR, 's33', 'px')
            stamp(a, opt, 'px1')
            tg = gather_xn(a)
            S.win = None
            for p in STR[:NR]:
                if (1, p) not in S.tok: S.issue(1, p)
            a.wait(tg[G0 - 1])
            a('s_barrier')
            stamp(a, opt, 'gath1')
        for e in range(2):
            for p in range(4):
                a(f'v_cvt_pk_bf16_f32 v{XO+4*e+p}, v{X+8*e+2*p}, v{X+8*e+2*p+1}')
            a(f'buffer_store_dwordx4 v[{XO+4*e}:{XO+4*e+3}], v{vQ}, s[52:55], 0 offen offset:{896*e} {opt.get("omod", "")}')
        a(f's_add_u32 s43, s43, 1\nv_mov_b32 v{vD0}, s43\ns_cmp_eq_u32 s2, 0\ns_cselect_b32 s26, 0, {OOB}\ns_mov_b64 exec, 1')
        a(f'buffer_store_dword v{vD0}, off, s[8:11], s26\ns_mov_b64 exec, -1')
        stamp(a, opt, 'end')
        dump_stamps(a, opt)
    a('s_endpgm')


def build(opt):
    a = Asm()
    gen(a, opt)
    s = HDR + f'; @launch grid=(256,1,1) block=(256,1,1) lds={LDS_BYTES}\n'
    if opt.get('stamps'): s += '; STAMPS k:' + ','.join(STN) + '\n'
    s += '.amdgcn_target "amdgcn-amd-amdhsa--gfx950"\n' + a.finalize()
    s += kernel_desc(NAME + '_kernel', 512, 102, accum=256)
    return s


if __name__ == '__main__':
    opt = {}
    for x in sys.argv[2:]:
        k, v = x.split('=')
        opt[k] = int(v) if v.lstrip('-').isdigit() else v
    open(sys.argv[1], 'w').write(build(opt))
```

```python
import sys, struct
from asmgen import *

NAME = 'interleave_layers__ssm_conv_h3__glu_gated_bilinear__prompt'
HDR = open('cdna_kernels/' + NAME + '.s.ref').read().split('; Override launch')[0]

EPOCH = 0
FU_L = 0x1000
FU_G = 0x2000
F_W = 0x3000
F_X0 = 0x5000
F_P = 0x7000
F_X1 = 0x9000
UR = 0x40000
XNL = 0x200000
YT = 0x3C0000
WW = 0x740000
URG = 0xBE0000
XNG1 = 0xDA0000
XNG2 = 0xF60000
PB1 = 0x1200000
PB2 = 0x2080000
STAMP = 0x2F00000
WS_BYTES = 0x3000000
OOB = 0x80000000
XBYTES = 2048 * 448 * 2
GROUPS = [(0, 1, 2), (3, 4), (5, 6)]
SPIN = 0x100000
f2u = lambda f: struct.unpack('<I', struct.pack('<f', f))[0]


def g2pos(j, step):
    base = 0
    for g in GROUPS:
        if j in g:
            return base + step * len(g) + (j - g[0])
        base += 7 * len(g)


STN = []
SSET = {'early': 'start ka kvi early kv kv2 ust uflag upoll hcp cstart mma end'.split(),
        'front': 'start cstart mma wst yst lnq wpa y E0 px0 wpoll gath0 g1_0 end'.split(),
        'all': 'start cstart yst y gath0 g1_0 g2_0 red0 gath1 g1_1 g2_1 pp1 end'.split(),
        'back': 'start gath0 g1_0 g2_0 pp0 red0 E1 px1 gath1 g1_1 g2_1 drain1 pp1 end'.split()}


def stamp(a, opt, n):
    if opt.get('stamps') and n in SSET[opt.get('sset', 'front')]:
        if n not in STN: STN.append(n)
        i = STN.index(n)
        assert i < 14
        a(f'{"s_memtime" if opt["stamps"] == 2 else "s_memrealtime"} s[{74+2*i}:{75+2*i}]')


def dump_stamps(a, opt):
    if not opt.get('stamps'):
        return
    a('s_waitcnt lgkmcnt(0) vmcnt(0)')
    if opt.get('dbg') is not None:
        a(f's_load_dwordx2 s[4:5], s[0:1], 88\ns_mov_b32 s6, 256\ns_lshl_b32 s26, s2, 2\ns_add_u32 s26, s26, s22\ns_cmp_eq_u32 s26, {opt["dbg"]}\ns_cselect_b32 s26, 0, {OOB}\ns_waitcnt lgkmcnt(0)')
        a('s_mov_b64 exec, 1')
        for i in range(1, min(17, len(STN))):
            a(f's_sub_u32 s3, s{74+2*i}, s74\nv_mov_b32 v2, s3\nbuffer_store_dword v2, off, s[4:7], s26 offset:{4*(i-1)}')
        a('s_mov_b64 exec, -1')
        return
    a(f's_lshl_b32 s26, s2, 2\ns_add_u32 s26, s26, s22\ns_lshl_b32 s26, s26, 7\ns_add_u32 s26, s26, {STAMP}')
    a('v_mov_b32 v1, 0\ns_mov_b64 exec, 1')
    for i in range(len(STN)):
        a(f'v_mov_b32 v2, s{74+2*i}\nbuffer_store_dword v2, v1, s[8:11], s26 offen offset:{4*i}')
    a('s_mov_b64 exec, -1')


L_XN = 0; L_H = 57344; L_ST = 125952
DELTA = [12, 0, 1, 4, 5, 8, 9, 12]
KC_UP = 4608; KC_H = 9216; KC_HP = 35328
KC_Y = KC_H + 2 * KC_HP
L_UB = 96256
L_WS = 105472
L_WA = 120320
L_LOC = 125440
LDS_BYTES = L_ST + 1024
W1P = 928

X = 16; YP = 32
vXR, vHB, vH1, vHa, vHb, vHc, vP, vPR, vXS, vQ, vW, vFW, vFR, vST, vSR = 1, 2, 3, 6, 7, 8, 9, 10, 11, 12, 13, 14, 15, 40, 41
vPL, vTAG, vEPS, vXG, vD0, vD1 = 42, 43, 44, 45, 46, 47
ACC = 48; RING = 160; NR = 14; XF = 224; HOWN = XF + 16
vY = 216; vTP = 217; vTQ = 218; vW2 = 219
T0 = ACC


def resident_set():
    res = [7 * k + j for k in range(14) for j in range(2)] + [98 + i for i in range(14, 49)]
    assert len(res) == 63
    return res


RES = resident_set()
STR = [p for p in range(147) if p not in RES]


class Stream:
    def __init__(self, a):
        self.a = a; self.tok = {}; self.win = None; self.limit = 98

    @staticmethod
    def reg(p):
        if p in RES:
            i = RES.index(p)
            return f'a[{4*i}:{4*i+3}]'
        n = STR.index(p) % NR
        return f'v[{RING + 4*n}:{RING + 4*n + 3}]'

    def issue(self, layer, p):
        if p < 98:
            k, j = divmod(p, 7)
            self.tok[(layer, p)] = self.a(f'buffer_load_dwordx4 {self.reg(p)}, v{vW if j < 4 else vW2}, s[8:11], s{60+k} offen offset:{(j & 3)*1024}')
            return
        w = p >> 2
        if w != self.win:
            self.a(f's_mov_b32 s31, {WW + w*4096}'); self.win = w
        self.tok[(layer, p)] = self.a(f'buffer_load_dwordx4 {self.reg(p)}, v{vW}, s[8:11], s31 offen offset:{(p & 3)*1024}')

    def prefetch(self, k):
        todo = sorted(p for p in set(STR[:NR] + RES) if (0, p) not in self.tok and p < self.limit)
        for p in todo[:k]: self.issue(0, p)
        return len(todo[:k])

    def refill(self, layer, p):
        n = STR.index(p) + NR
        if n < len(STR): self.issue(layer, STR[n])

    def wait(self, layer, p):
        self.a.wait(self.tok[(0 if p in RES else layer, p)])

    def state(self): return (dict(self.tok), None)

    def set_state(self, st): self.tok, self.win, self.limit = dict(st[0]), None, 98


def flag_store(a, vaddr, soff, mod, srd_='s[8:11]', off=0):
    a(f's_mov_b64 exec, 1\nbuffer_store_dword v{vTAG}, v{vaddr}, {srd_}, {soff} offen offset:{off} {mod}\ns_mov_b64 exec, -1')


def poll_masked(a, vaddr, soff, name):
    L = a.label(name)
    a('s_mov_b32 s34, 0')
    a(f'{L}:')
    a(f'buffer_load_dword v{vPL}, v{vaddr}, s[8:11], {soff} offen sc1')
    a(f's_add_u32 s34, s34, 1\ns_cmp_gt_u32 s34, {SPIN}\ns_cbranch_scc1 {L}_x')
    a(f's_waitcnt vmcnt(0)\nv_and_b32 v{vPL}, -16, v{vPL}')
    a(f'v_cmp_ne_u32 vcc, s42, v{vPL}\ns_cbranch_vccnz {L}')
    a(f'{L}_x:\ns_waitcnt vmcnt(0)')


def stats(a, rnd):
    t = T0 + 8
    for e in range(2):
        x = X + 8 * e; s = t + 4 * e
        a(f'v_pk_add_f32 v[{s}:{s+1}], v[{x}:{x+1}], v[{x+2}:{x+3}]')
        a(f'v_pk_mul_f32 v[{s+2}:{s+3}], v[{x}:{x+1}], v[{x}:{x+1}]')
        a(f'v_pk_add_f32 v[{s}:{s+1}], v[{s}:{s+1}], v[{x+4}:{x+5}]')
        a(f'v_pk_fma_f32 v[{s+2}:{s+3}], v[{x+2}:{x+3}], v[{x+2}:{x+3}], v[{s+2}:{s+3}]')
        a(f'v_pk_add_f32 v[{s}:{s+1}], v[{s}:{s+1}], v[{x+6}:{x+7}]')
        a(f'v_pk_fma_f32 v[{s+2}:{s+3}], v[{x+4}:{x+5}], v[{x+4}:{x+5}], v[{s+2}:{s+3}]')
        a(f'v_add_f32 v{s}, v{s}, v{s+1}')
        a(f'v_pk_fma_f32 v[{s+2}:{s+3}], v[{x+6}:{x+7}], v[{x+6}:{x+7}], v[{s+2}:{s+3}]')
    a(f'v_add_f32 v{t+2}, v{t+2}, v{t+3}\nv_add_f32 v{t+6}, v{t+6}, v{t+7}')
    S0, Q0, S1, Q1 = t, t + 2, t + 4, t + 6
    a(f'v_permlane32_swap_b32 v{S0}, v{S1}\nv_permlane32_swap_b32 v{Q0}, v{Q1}')
    a(f'v_add_f32 v{S0}, v{S0}, v{S1}\nv_add_f32 v{Q0}, v{Q0}, v{Q1}')
    a(f'v_permlane16_swap_b32 v{S0}, v{Q0}')
    a(f'v_add_f32 v{S0}, v{S0}, v{Q0}')
    a(f'v_add_f32_dpp v{S0}, v{S0}, v{S0} row_ror:4 row_mask:0xf bank_mask:0xf')
    a(f'v_add_f32_dpp v{S0}, v{S0}, v{S0} row_ror:8 row_mask:0xf bank_mask:0xf')
    a(f'ds_write_b32 v{vST}, v{S0} offset:{256*rnd}')
    a('s_waitcnt lgkmcnt(0)\ns_barrier')
    tk = [a(f'ds_read_b128 v[{t+4*i}:{t+4*i+3}], v{vSR} offset:{256*rnd + 16*i}') for i in range(4)]
    for e in range(2):
        s = t + 8 * e; q = s + 4
        a.wait(tk[2 * e + 1])
        a(f'v_pk_add_f32 v[{s}:{s+1}], v[{s}:{s+1}], v[{s+2}:{s+3}]\nv_pk_add_f32 v[{q}:{q+1}], v[{q}:{q+1}], v[{q+2}:{q+3}]')
        a(f'v_add_f32 v{s}, v{s}, v{s+1}\nv_add_f32 v{q}, v{q}, v{q+1}')
        a(f'v_mul_f32 v{s}, s36, v{s}\nv_fma_f32 v{q}, v{q}, s36, v{vEPS}')
        a(f'v_fma_f32 v{q}, -v{s}, v{s}, v{q}\nv_max_f32 v{q}, v{q}, v{vEPS}\nv_rsq_f32 v{T0+4*e}, v{q}')
        a(f'v_mul_f32_e64 v{T0+4*e+2}, -v{s}, v{T0+4*e}')


YF = T0 + 64; Z = T0 + 80; XO = T0 + 96


def norm_to(a, dst):
    for e in range(2):
        for p in range(4):
            x = X + 8 * e + 2 * p; z = dst + 8 * e + 2 * p
            a(f'v_pk_fma_f32 v[{z}:{z+1}], v[{x}:{x+1}], v[{T0+4*e}:{T0+4*e+1}], v[{T0+4*e+2}:{T0+4*e+3}] op_sel_hi:[1,0,0]')


def unpack_y(a):
    for i in range(8):
        a(f'v_lshlrev_b32 v{YF+i}, 16, v{YP+i}\nv_and_b32 v{YF+8+i}, 0xffff0000, v{YP+i}')


def gate_and_norm(a, rnd, store):
    for p in range(8):
        x = X + 2 * p
        a(f'v_pk_fma_f32 v[{x}:{x+1}], v[{Z+2*p}:{Z+2*p+1}], v[{YF+2*p}:{YF+2*p+1}], v[{x}:{x+1}]')
    stats(a, rnd)
    norm_to(a, Z)
    for e in range(2):
        for p in range(4):
            a(f'v_cvt_pk_bf16_f32 v{XO+4*e+p}, v{Z+8*e+2*p}, v{Z+8*e+2*p+1}')
        store(e)


def gather_xn(a):
    a(f's_mul_i32 s33, s22, 14336\ns_add_u32 s34, s33, s35')
    toks = []
    for i in range(14):
        a('s_mov_b32 m0, s33\ns_add_u32 s33, s33, 1024')
        toks.append(a(f'buffer_load_dwordx4 v{vXG}, s[8:11], s34 offen sc1 lds\ns_add_u32 s34, s34, 1024'))
    return toks


def ffn(a, S, opt, layer, tg, pbase, pmod, touch, settle, tagn):
    acc1 = lambda j, mt: ACC + 4 * (mt * 7 + j)
    acc2 = lambda j, mt: ACC + 4 * (j * 4 + mt)
    xr = lambda buf, mt: XF + 16 * buf + 4 * mt
    wwait = lambda p: S.wait(layer, p)
    a(f's_mov_b32 s38, {pbase}\ns_mov_b32 s39, {pbase + 4*57344}')
    xt = {}
    def xload(k, mt):
        xt[(k, mt)] = a(f'ds_read_b128 v[{xr(k & 1, mt)}:{xr(k & 1, mt)+3}], v{vXR} offset:{(mt*14 + k)*1024}')
    for mt in range(4): xload(0, mt)
    def conv_h(mt):
        ops = []
        for j in range(7):
            d = acc1(j, mt)
            dst = (HOWN + 4 * mt + j) if j < 4 else (acc1(4, mt) + (j - 4))
            if opt.get('pkh', 1): ops.append(f'v_pk_mul_f32 v[{d}:{d+1}], v[{d}:{d+1}], v[{d+2}:{d+3}]')
            else: ops += [f'v_mul_f32 v{d}, v{d}, v{d+2}', f'v_mul_f32 v{d+1}, v{d+1}, v{d+3}']
            ops.append(f'v_cvt_pk_bf16_f32 v{dst}, v{d}, v{d+1}')
        h = HOWN + 4 * mt; o = acc1(4, mt)
        ops.insert(8 if opt.get('pkh', 1) else 12, f'ds_write_b128 v{vHa}, v[{h}:{h+3}] offset:{7168*mt}')
        ops.append(f'ds_write_b64 v{vHb}, v[{o}:{o+1}] offset:{7168*mt}')
        ops.append(f'ds_write_b32 v{vHc}, v{o+2} offset:{7168*mt}')
        return ops
    G0 = opt.get('g0', 4)
    late = []
    for k in range(14):
        last = k == 13
        order = [(j, mt) for j in range(7) for mt in range(4)] if not last else [(j, mt) for mt in range(4) for j in range(7)]
        fill = []
        gap = {}
        for i, f in enumerate(late): gap.setdefault(1 + i, []).append(f)
        late = []
        if not last:
            for mt in range(4): gap.setdefault(3 + 4 * mt, []).append(lambda k=k, mt=mt: xload(k + 1, mt))
            for j in range(7):
                p = 7 * k + j
                if p in STR:
                    f = lambda p=p: S.refill(layer, p)
                    if j < 6: gap.setdefault(4 * j + 5, []).append(f)
                    else: late.append(f)
            if layer == 0:
                for i in range(opt.get('rps', 2)): gap.setdefault((5, 9, 22, 26)[i], []).append(lambda: S.prefetch(1))
        for n, (j, mt) in enumerate(order):
            p = 7 * k + j
            if opt.get('wmerge', 1) and not last and k > 0:
                if n == 0: a.wait(*[xt[(k, m)] for m in range(4)])
                if mt == 0 and j in (0, 2, 4): a.wait(*[S.tok[(0 if q in RES else layer, q)] for q in range(p, p + (2 if j < 4 else 3))])
            wwait(p); a.wait(xt[(k, mt)])
            d = acc1(j, mt)
            c = '0' if k == 0 else f'v[{d}:{d+3}]'
            a(f'v_mfma_f32_16x16x32_bf16 v[{d}:{d+3}], {S.reg(p)}, v[{xr(k & 1, mt)}:{xr(k & 1, mt)+3}], {c}')
            if k == G0 - 1 and n == 2:
                a.wait(tg[-1]); a('s_barrier')
            if layer == 0 and k == 3 and n == 14: twc = a('buffer_load_dword v222, v221, s[8:11], 0 offen sc1')
            if layer == 0 and k == 6 and n == 14:
                assert all(q < 98 for (_, q) in S.tok)
                settle(twc, 222, 221, 'wc' + tagn)
                S.limit = 147
            for f in gap.get(n, []): f()
            if last:
                if mt >= 1 and j == 2: fill += conv_h(mt - 1)
                for _ in range(3 if opt.get('pkh', 1) else 4):
                    if fill: a(fill.pop(0))
                if mt == 3 and p in STR: S.refill(layer, p)
        for f in fill: a(f)
    stamp(a, opt, f'g1_{layer}')
    if layer == 0 and touch is not None: S.prefetch(99)
    if touch is not None:
        a(f'buffer_load_dword v{vD0}, v{vTP}, s[8:11], s38 offen {touch}\nbuffer_load_dword v{vD1}, v{vTQ}, s[8:11], s38 offen {touch}')
    pend = conv_h(3)
    nxt = list(STR[:NR]) if opt.get('ringg2', 1) == 1 else []
    ht = {}
    hreg = lambda n, mt: XF + 16 * ((n + 1) & 1) + 4 * mt
    def hload(n, mt):
        st = n % 7
        addr, off = (vHa if st == 0 else vH1 + st - 1, 7168 * mt) if st < 4 else (vHB, 7168 * mt + 1024 * st)
        ht[(n, mt)] = a(f'ds_read_b128 v[{hreg(n, mt)}:{hreg(n, mt)+3}], v{addr} offset:{off}')
    for gi, g in enumerate(GROUPS):
        for step in range(7):
            ng = 7 * gi + step
            order = [(j, mt) for mt in range(4) for j in g] if ng == 0 else [(j, mt) for j in g for mt in range(4)]
            for n, (j, mt) in enumerate(order):
                pp = 98 + g2pos(j, step)
                wwait(pp)
                if ng > 1 and n == 0 and opt.get('wmerge', 1): a.wait(*[ht[(ng, m)] for m in range(4)])
                if ng > 0: a.wait(ht[(ng, mt)])
                d = acc2(j, mt)
                c = '0' if step == 0 else f'v[{d}:{d+3}]'
                a(f'v_mfma_f32_16x16x32_bf16 v[{d}:{d+3}], {S.reg(pp)}, v[{hreg(ng, mt)}:{hreg(ng, mt)+3}], {c}')
                if ng == 0:
                    for _ in range(2 if opt.get('pkh', 1) else 3):
                        if pend: a(pend.pop(0))
                    if n == 8:
                        assert not pend
                        a('s_waitcnt lgkmcnt(0)\ns_barrier')
                        hload(1, 0); hload(1, 1)
                    if n in (9, 10): hload(1, n - 7)
                elif ng < 7 * len(GROUPS) - 1 and n < 4: hload(ng + 1, n)
                if mt == 3 and pp in STR: S.refill(layer, pp)
                if layer == 0 and mt == 1:
                    if not S.prefetch(1) and nxt and pp >= 98 + NR + 1: S.issue(1, nxt.pop(0))
                if step >= 1 and (n >= 4 or opt.get('pper', 2) == 1):
                    for _ in range(opt.get('pper', 2)):
                        if pend: a(pend.pop(0))
        assert not pend
        for j in g:
            for aa in range(2):
                d = acc2(j, 2 * aa)
                for i in range(4):
                    pend.append(f'v_cvt_pk_bf16_f32 v{d+i}, v{d+2*i}, v{d+2*i+1}')
                pend.append(f'buffer_store_dwordx4 v[{d}:{d+3}], v{vP}, s[8:11], s{38+aa} offen offset:{256*j} {pmod}')
    stamp(a, opt, f'g2_{layer}')
    for f in pend: a(f)


def conv_phase(a, opt, which, post_barrier):
    vA, vB, vC3, vL15, vL4, vLN = 192, 193, 194, 195, 196, 197
    A0, B0, CA = 64, 128, 48
    for half, qs in ((((0, (7, 4, 3, 0)), (1, (6, 5, 2, 1))), ((0, (7, 5, 3, 0)), (1, (6, 4, 2, 1))), ((0, (7, 5, 4, 0)), (1, (6, 3, 2, 1))))[opt.get('qsplit', 2)][which],):
        qmax = qs[0]
        order = list(range(8))
        def loads(it):
            g0 = order[it]; buf = it & 1
            seq = []
            for i in range(qmax + 1):
                seq += [('A', i), ('B', qmax - i)]
            return [(k, i, (f'ds_read_b128 v[{A0+32*buf+4*i}:{A0+32*buf+4*i+3}], v{vA} offset:{512*i + 64*g0}' if k == 'A' else
                            f'ds_read_b128 v[{B0+32*buf+4*i}:{B0+32*buf+4*i+3}], v{vB} offset:{512*(7-i) + 64*g0}')) for k, i in seq]
        toks = {}
        for k, i, txt in loads(0):
            toks[(0, k, i)] = a(txt)
        for it in range(8):
            buf = it & 1
            nxt = loads(it + 1) if it < 7 else []
            if post_barrier: post_barrier(it)
            pairs = [(q, g1) for g1 in range(qmax + 1) for q in qs if q >= g1]
            for n, (q, g1) in enumerate(pairs):
                m = q - g1
                a.wait(toks[(it, 'A', g1)], toks[(it, 'B', m)])
                acc = CA + 4 * qs.index(q)
                c = '0' if (it == 0 and g1 == 0) else f'v[{acc}:{acc+3}]'
                a(f'v_mfma_f32_16x16x32_bf16 v[{acc}:{acc+3}], v[{A0+32*buf+4*g1}:{A0+32*buf+4*g1+3}], v[{B0+32*buf+4*m}:{B0+32*buf+4*m+3}], {c}')
                if nxt:
                    k, i, txt = nxt.pop(0)
                    toks[(it + 1, k, i)] = a(txt)
            assert not nxt
        stamp(a, opt, 'mma')
        a(f'v_lshlrev_b32 v198, 5, v{vL15}\nv_lshl_add_u32 v198, v{vL4}, 3, v198')
        a(f's_add_u32 s26, s28, {4088 - 3584}\nv_sub_u32 v199, s26, v198')
        tu = [a(f'ds_read_b64 v[{64+2*i}:{65+2*i}], v199 offset:{512*(7-q)}') for i, q in enumerate(qs)]
        a(f's_lshl_b32 s26, s22, 12\ns_add_u32 s26, s26, {KC_Y}\nv_lshl_add_u32 v198, v198, 1, s26\nv_add_u32 v199, s26, v{vXR}')
        for i, q in enumerate(qs):
            acc = CA + 4 * i
            a.wait(tu[i])
            lo, hi = 64 + 2 * i, 65 + 2 * i
            a(f'v_and_b32 v72, 0xffff0000, v{hi}\nv_lshlrev_b32 v73, 16, v{hi}\nv_and_b32 v74, 0xffff0000, v{lo}\nv_lshlrev_b32 v75, 16, v{lo}')
            for r in range(4):
                a(f'v_fmac_f32 v{acc+r}, s58, v{72+r}')
            a(f'v_cvt_pk_bf16_f32 v{acc}, v{acc}, v{acc+1}\nv_cvt_pk_bf16_f32 v{acc+2}, v{acc+2}, v{acc+3}')
            a(f'v_mov_b32 v{acc+1}, s42\nv_mov_b32 v{acc+3}, s42')
            a(f'ds_write_b128 v198, v[{acc}:{acc+3}] offset:{1024*i}')
        a('s_waitcnt lgkmcnt(0)')
        ty = [a(f'ds_read_b128 v[{64+4*i}:{67+4*i}], v199 offset:{1024*i}') for i in range(4)]
        a(f's_lshl_b32 s26, s30, 1\ns_add_u32 s26, s26, {YT}')
        for i, q in enumerate(qs):
            a(f's_add_u32 s3, s26, {1024*q}')
            a.wait(ty[i]); a(f'buffer_store_dwordx4 v[{64+4*i}:{67+4*i}], v{vXR}, s[8:11], s3 offen sc1')


def lane_roles(a, base):
    t2, q, mm, kap, oob, row, t = range(base, base + 7)
    a(f'v_lshrrev_b32 v{t2}, 4, v0\nv_bfe_u32 v{q}, v0, 2, 2\nv_and_b32 v{mm}, 3, v0')
    a(f's_lshl_b32 s26, s22, 2\nv_add_u32 v{kap}, s26, v{t2}\nv_cmp_gt_u32 vcc, 14, v{kap}\nv_mov_b32 v{oob}, {OOB}')
    return t2, q, mm, kap, oob, row, t


def xs_address(a, q, mm, kap, oob, t):
    a('s_mul_i32 s33, s20, 57344\ns_lshr_b32 s26, s21, 2\ns_mul_i32 s26, s26, 28672\ns_add_u32 s26, s26, s33\ns_and_b32 s3, s21, 3\ns_lshl_b32 s3, s3, 6\ns_add_u32 s26, s26, s3')
    a(f'v_lshlrev_b32 v{t}, 10, v{kap}\nv_lshl_add_u32 v{t}, v{q}, 8, v{t}\nv_lshl_add_u32 v{t}, v{mm}, 4, v{t}\nv_add_u32 v{t}, s26, v{t}\nv_cndmask_b32 v{vXS}, v{oob}, v{t}, vcc')


def ffn_addresses1(a, xs=False):
    t2, q, mm, kap, oob, row, t = lane_roles(a, 204)
    a('s_lshl_b32 s26, s20, 6\ns_lshl_b32 s3, s21, 3\ns_add_u32 s26, s26, s3')
    a(f'v_lshl_add_u32 v{row}, v{mm}, 1, s26\nv_mul_u32_u24 v{t}, 896, v{row}\nv_lshl_add_u32 v{t}, v{kap}, 6, v{t}\nv_lshl_add_u32 v{t}, v{q}, 4, v{t}')
    a(f'v_cndmask_b32 v{vQ}, v{oob}, v{t}, vcc\ns_mov_b64 s[16:17], vcc')
    a(f'v_lshlrev_b32 v{t}, 18, v{kap}\nv_lshl_add_u32 v{t}, v{q}, 16, v{t}\nv_lshl_add_u32 v{t}, v{row}, 2, v{t}\nv_cndmask_b32 v{vY}, v{oob}, v{t}, vcc')
    if xs: xs_address(a, q, mm, kap, oob, t)
    a(f's_lshl_b32 s26, s22, 2\ns_add_u32 s26, s26, {L_ST}\nv_lshlrev_b32 v{t}, 6, v{mm}\nv_lshl_add_u32 v{vST}, v{t2}, 4, v{t}\nv_add_u32 v{vST}, s26, v{vST}\nv_add_u32 v{vSR}, {L_ST}, v{t}')
    a(f'v_mov_b32 v{vEPS}, {f2u(1e-5)}\ns_mov_b32 s36, {f2u(1/448.)}')


def ffn_addresses2(a):
    a(f's_lshl_b32 s26, s21, 2\ns_add_u32 s26, s26, s22\ns_mul_i32 s26, s26, 150528\nv_add_u32 v{vW}, s26, v{vXR}\nv_add_u32 v{vW2}, 4096, v{vW}')
    for k in range(14): a(f's_mov_b32 s{60+k}, {WW + 7168*k}')


def ffn_addresses3(a):
    t2, q, mm, kap, oob, row, t = lane_roles(a, T0 + 48)
    xs_address(a, q, mm, kap, oob, t)
    a(f'v_add_u32 v{vXG}, s33, v{vXR}')
    a(f's_mul_i32 s33, s20, 458752\ns_mul_i32 s26, s21, 57344\ns_add_u32 s26, s26, s33\nv_and_b32 v{t}, 15, v0\nv_lshlrev_b32 v{t}, 4, v{t}\nv_lshl_add_u32 v{t}, v{kap}, 9, v{t}\nv_add_u32 v{t}, s26, v{t}\nv_cndmask_b32 v{vPR}, v{oob}, v{t}, vcc')
    a(f's_mul_i32 s3, s22, 14336\ns_add_u32 s26, s26, s3\nv_lshl_add_u32 v{vTP}, v0, 7, s26\nv_min_u32 v{vTQ}, 47, v0\ns_add_u32 s26, s26, 8192\nv_lshl_add_u32 v{vTQ}, v{vTQ}, 7, s26')
    a(f's_mul_i32 s26, s21, 7168\ns_add_u32 s26, s26, s33\ns_mul_i32 s3, s22, 1792\ns_add_u32 s26, s26, s3')
    a(f'v_mul_u32_u24 v{t}, 57344, v{q}\nv_lshl_add_u32 v{t}, v{t2}, 6, v{t}\nv_lshl_add_u32 v{t}, v{mm}, 4, v{t}\nv_add_u32 v{vP}, s26, v{t}')
    a(f'v_add_u32 v{vHB}, {L_H}, v{vXR}')
    for st in range(1, 4):
        a(f's_xor_b32 s26, s22, {st}\ns_lshl_b32 s26, s26, 10\nv_add_u32 v{vH1+st-1}, s26, v{vHB}')
    a(f's_lshl_b32 s26, s22, 10\nv_add_u32 v{vHa}, s26, v{vHB}')
    a(f's_lshr_b32 s26, s22, 1\ns_lshl_b32 s26, s26, 10\ns_and_b32 s3, s22, 1\ns_lshl_b32 s3, s3, 3\ns_add_u32 s26, s26, s3\ns_add_u32 s26, s26, 4096\nv_add_u32 v{vHb}, s26, v{vHB}')
    a(f's_lshl_b32 s26, s22, 2\ns_add_u32 s26, s26, 6144\nv_add_u32 v{vHc}, s26, v{vHB}')
    a(f's_mov_b32 s40, 0x3f80\ns_mov_b32 s41, 0x3f800000')


def q_and_touch(a, touch):
    a(f's_mov_b32 s4, s56\ns_mov_b32 s5, s57\ns_mov_b32 s6, {XBYTES}')
    tq = [a(f'buffer_load_dwordx4 v[{YP+4*e}:{YP+4*e+3}], v{vQ}, s[4:7], 0 offen offset:{896*e} nt') for e in range(2)]
    for e in range(2 if touch else 0):
        a(f's_mov_b32 s33, {XNL + 14336*e}\nbuffer_load_dword v{vD0}, v{vXS}, s[8:11], s33 offen sc1')
    return tq


def flag_touch(a):
    a(f's_lshl_b32 s26, s20, 8\ns_add_u32 s26, s26, {F_X0}\nv_mov_b32 v211, s26')
    for i, (base, sh) in enumerate(((F_P, 7), (F_P + 4096, 7), (F_X1, 7))):
        a(f's_lshl_b32 s26, s20, {sh}\ns_add_u32 s26, s26, {base}\nv_writelane_b32 v211, s26, {1+i}')
    a(f's_lshl_b32 s26, s24, 8\ns_add_u32 s26, s26, {FU_L}')
    for i in range(2):
        a(f'v_writelane_b32 v211, s26, {4+i}\ns_add_u32 s26, s26, 128')
    a(f'buffer_load_dword v{vD0}, v211, s[8:11], 0 offen sc1')


def code_prefetch(a):
    a('s_getpc_b64 s[4:5]\nL_pc:\ns_sub_u32 s4, s4, L_pc-' + NAME + '_kernel\ns_subb_u32 s5, s5, 0\ns_mov_b32 s6, L_code_end-' + NAME + '_kernel')
    a('s_lshl_b32 s26, s25, 11\ns_and_b32 s3, s22, 1\ns_lshl_b32 s3, s3, 10\ns_add_u32 s26, s26, s3\nv_and_b32 v212, 7, v0\nv_lshl_add_u32 v212, v212, 7, s26')
    a(f'buffer_load_dword v{vD0}, v212, s[4:7], 0 offen')


class WTask:
    WL = 224

    def __init__(self, a, nt, lds_base):
        self.a, self.nt = a, nt
        a(f's_and_b32 s48, s26, 3\ns_lshl_b32 s48, s48, 1\ns_and_b32 s3, s22, 1\ns_add_u32 s48, s48, s3\ns_lshr_b32 s50, s26, 2')
        a(f's_mul_i32 s59, s50, {8*3584}\ns_mul_i32 s3, s48, 448\ns_add_u32 s59, s59, s3')
        a(f's_lshl_b32 s32, s48, 9\ns_lshl_b32 s3, s50, 2\ns_add_u32 s32, s32, s3\ns_add_u32 s32, s32, {F_W + 4*(56 - 14)}')
        a(f's_mul_i32 s48, s48, {4*150528}\ns_lshr_b32 s3, s50, 2\ns_mul_i32 s3, s3, 7168\ns_add_u32 s48, s48, s3\ns_and_b32 s3, s50, 3\ns_lshl_b32 s3, s3, 8\ns_add_u32 s48, s48, s3\ns_add_u32 s48, s48, {WW}')
        a(f's_cmp_lt_u32 s26, 224\ns_cselect_b32 s59, s59, {OOB}\ns_cselect_b32 s48, s48, {OOB}\ns_cselect_b32 s32, s32, {OOB}\ns_add_u32 s49, s48, 4096')
        a(f's_mov_b32 s12, s44\ns_mov_b32 s13, s45\ns_mov_b32 s44, s46\ns_mov_b32 s45, s47\ns_mov_b32 s14, {448*3584}\ns_mov_b32 s46, s14\ns_mov_b32 s47, 0x20000')
        a('v_mul_u32_u24 v213, 2341, v0\nv_lshrrev_b32 v213, 16, v213\nv_mul_u32_u24 v214, 28, v213\nv_sub_u32 v214, v0, v214')
        a(f'v_mul_u32_u24 v222, 3584, v213\nv_lshl_add_u32 v222, v214, 4, v222\nv_mov_b32 v215, {OOB}\nv_cmp_gt_u32 vcc, 56, v0\nv_cndmask_b32 v222, v215, v222, vcc')
        a(lds_base)
        a(f'v_mul_u32_u24 v220, {W1P}, v213\nv_lshl_add_u32 v220, v214, 5, v220\nv_add_u32 v220, s3, v220')
        a(f'v_lshrrev_b32 v213, 4, v0\nv_bfe_u32 v214, v0, 2, 2\nv_mul_u32_u24 v221, {W1P}, v214\nv_mul_u32_u24 v214, 224, v213\nv_add_u32 v221, v221, v214')
        a(f'v_and_b32 v214, 3, v0\nv_lshl_add_u32 v221, v214, 3, v221\nv_add_u32 v221, s3, v221')
        a(f's_mov_b32 s3, 150528\nv_mul_lo_u32 v215, v213, s3\nv_and_b32 v214, 15, v0\nv_lshl_add_u32 v215, v214, 4, v215\nv_mov_b32 v223, {OOB}\nv_writelane_b32 v223, s32, 0')

    def loads(self):
        a, WL = self.a, self.WL
        self.tl = []
        for it in range(4):
            self.tl.append((a(f'buffer_load_dwordx4 v[{WL+8*it}:{WL+8*it+3}], v222, s[12:15], s59 offen {self.nt}'),
                            a(f'buffer_load_dwordx4 v[{WL+8*it+4}:{WL+8*it+7}], v222, s[44:47], s59 offen {self.nt}')))
            a(f's_add_u32 s59, s59, {2*3584}')

    def stage(self):
        a, WL = self.a, self.WL
        a('s_mov_b32 exec_hi, 0xffffff')
        for i in range(4):
            g, u = WL + 8 * i, WL + 8 * i + 4
            a.wait(*self.tl[i])
            a(f'ds_write2_b32 v220, v{g}, v{u} offset0:0 offset1:1\nds_write2_b32 v220, v{g+1}, v{u+1} offset0:2 offset1:3')
            a(f'ds_write2_b32 v220, v{g+2}, v{u+2} offset0:4 offset1:5\nds_write2_b32 v220, v{g+3}, v{u+3} offset0:6 offset1:7')
            if i < 3: a(f'v_add_u32 v220, {2*W1P}, v220')
        a('s_mov_b64 exec, -1')

    def transpose(self):
        a, WO = self.a, self.WL
        self.tr = []
        for j in range(7):
            a(f'ds_read_b64_tr_b16 v[{WO+4*j}:{WO+4*j+1}], v221 offset:{32*j}')
            self.tr.append(a(f'ds_read_b64_tr_b16 v[{WO+4*j+2}:{WO+4*j+3}], v221 offset:{32*j + 4*W1P}'))

    def store(self):
        a, WO = self.a, self.WL
        self.tws = []
        for j in range(7):
            a.wait(self.tr[j])
            self.tws.append(a(f'buffer_store_dwordx4 v[{WO+4*j}:{WO+4*j+3}], v215, s[8:11], {"s48" if j < 4 else "s49"} offen offset:{1024*(j & 3)} sc1'))


def make_tag(a):
    a(f's_mul_i32 s42, s43, 0x9E3779B1\ns_add_u32 s42, s42, 0x7F4A7C15\ns_and_b32 s42, s42, -16\ns_or_b32 s23, s23, s42\nv_mov_b32 v{vTAG}, s23')


def gen(a, opt):
    global GROUPS
    if opt.get('groups') == 2: GROUPS = [(0, 1, 2, 3), (4, 5, 6)]
    NT = opt.get('nt', 'nt') if opt.get('nt', 'nt') != 'none' else ''
    kernel_begin(a, NAME + '_kernel')
    a('s_cmp_ge_u32 s2, 256\ns_cbranch_scc1 L_end')
    stamp(a, opt, 'start')
    a('s_load_dwordx8 s[28:35], s[0:1], 8')
    a('s_load_dwordx2 s[8:9], s[0:1], 96')
    a('s_load_dwordx2 s[56:57], s[0:1], 0')
    a('s_load_dwordx2 s[38:39], s[0:1], 40')
    a('s_load_dwordx4 s[44:47], s[0:1], 56')
    a('s_load_dwordx4 s[52:55], s[0:1], 72')
    a('s_getreg_b32 s23, hwreg(HW_REG_XCC_ID, 0, 4)\ns_add_u32 s23, s23, 1')
    a(f'v_lshrrev_b32 v48, 6, v0\nv_mov_b32 v49, v0\nv_and_b32 v0, 63, v0\nv_readfirstlane_b32 s22, v48\nv_lshlrev_b32 v{vXR}, 4, v0')
    a('s_and_b32 s24, s2, 7\ns_lshr_b32 s25, s2, 3')
    a('s_lshl_b32 s20, s24, 2\ns_lshr_b32 s21, s2, 6\ns_add_u32 s20, s20, s21\ns_and_b32 s21, s25, 7')
    a(f's_mov_b32 s10, {WS_BYTES}\ns_mov_b32 s11, 0x20000\ns_mov_b32 s7, 0x20000\ns_mov_b32 s15, 0x20000\ns_mov_b32 s19, 0x20000')
    if opt.get('probe'):
        a('s_load_dwordx2 s[4:5], s[0:1], 48\ns_waitcnt lgkmcnt(0)')
        if opt['probe'] == 'ws': a('s_add_u32 s4, s8, 0x6000000\ns_addc_u32 s5, s9, 0')
        a(f's_mov_b32 s6, {XBYTES}\ns_mul_i32 s26, s2, 7168\ns_mul_i32 s3, s22, 1792\ns_add_u32 s26, s26, s3')
        for r in range(12):
            a(f'buffer_load_dword v50, off, s[4:7], s26 offset:{128*r}\ns_waitcnt vmcnt(0)')
    a('s_cmp_eq_u32 s24, 7\ns_cbranch_scc1 L_spare')
    a('v_and_b32 v50, 31, v0\nv_lshrrev_b32 v51, 5, v49')
    a('s_lshl_b32 s26, s25, 6\nv_lshl_add_u32 v52, v51, 3, s26')
    a('s_lshl_b32 s26, s24, 7\nv_lshl_add_u32 v53, v50, 2, s26')
    a('v_mul_u32_u24 v54, 896, v52\nv_add_u32 v54, v54, v53')
    a(f'v_subrev_u32 v55, 2688, v54\nv_mov_b32 v56, {OOB}\nv_cmp_eq_u32 vcc, 0, v52\nv_lshlrev_b32 v57, 2, v53\nv_cndmask_b32 v55, v55, v56, vcc')
    a('s_movk_i32 s26, 4480')
    a(f's_mov_b32 s14, {XBYTES}\ns_mov_b32 s18, {XBYTES}\ns_movk_i32 s6, 3584')
    a('s_waitcnt lgkmcnt(0)')
    stamp(a, opt, 'ka')
    a('s_mov_b32 s12, s28\ns_mov_b32 s13, s29\ns_mov_b32 s16, s30\ns_mov_b32 s17, s31\ns_mov_b32 s4, s32\ns_mov_b32 s5, s33')
    K0, V0, SH = 64, 76, 60
    tk = []
    for j in range(3):
        tk.append(a(f'buffer_load_dword v{K0+j}, v55, s[12:15], 0 offen offset:{896*j} {NT}'))
    for j in range(8):
        so, off = ('0', 896 * j) if j < 5 else ('s26', 896 * (j - 5))
        tk.append(a(f'buffer_load_dword v{K0+3+j}, v54, s[12:15], {so} offen offset:{off} {NT}'))
    tw = a(f'buffer_load_dwordx4 v[{SH}:{SH+3}], v57, s[4:7], 0 offen')
    tv = []
    for j in range(8):
        so, off = ('0', 896 * j) if j < 5 else ('s26', 896 * (j - 5))
        tv.append(a(f'buffer_load_dword v{V0+j}, v54, s[16:19], {so} offen offset:{off} {NT}'))
    stamp(a, opt, 'kvi')
    a('s_load_dword s43, s[8:9], 0x0')
    a('s_lshl_b32 s26, s24, 5\ns_add_u32 s26, s26, s25\ns_lshl_b32 s26, s26, 2\ns_load_dword s58, s[38:39], s26')
    a('s_and_b32 s51, s22, 1\ns_lshr_b32 s27, s22, 1')
    a('s_lshl_b32 s30, s24, 5\ns_add_u32 s30, s30, s25\ns_lshl_b32 s30, s30, 1\ns_add_u32 s30, s30, s51\ns_lshl_b32 s30, s30, 12')
    a(f's_mul_i32 s28, s51, {KC_UP}\ns_mul_i32 s29, s51, {KC_HP}\ns_add_u32 s29, s29, {KC_H + 256}')
    a(f's_lshl_b32 s37, s24, 18\ns_lshl_b32 s3, s25, 7\ns_sub_u32 s37, s37, s3\ns_add_u32 s37, s37, {4096 - 128}\ns_lshl_b32 s3, s51, 17\ns_add_u32 s37, s37, s3')
    vA, vB, vC3, vL15, vL4 = 192, 193, 194, 195, 196

    def kv_compute():
        WT, KF, VF, UF = 88, 96, 118, 120
        a.wait(tw)
        stamp(a, opt, 'kv')
        for tau in range(4):
            for c in range(2):
                src = SH + 2 * c + (tau >> 1)
                a(f'v_lshlrev_b32 v{WT+2*tau+c}, 16, v{src}' if tau % 2 == 0 else f'v_and_b32 v{WT+2*tau+c}, 0xffff0000, v{src}')
        for j in range(11):
            a(f'v_lshlrev_b32 v{KF+2*j}, 16, v{K0+j}\nv_and_b32 v{KF+2*j+1}, 0xffff0000, v{K0+j}')
        for j in range(8):
            u = UF + 2 * j
            a(f'v_pk_mul_f32 v[{u}:{u+1}], v[{KF+2*(j+3)}:{KF+2*(j+3)+1}], v[{WT}:{WT+1}]')
            for tau in range(1, 4):
                a(f'v_pk_fma_f32 v[{u}:{u+1}], v[{KF+2*(j+3-tau)}:{KF+2*(j+3-tau)+1}], v[{WT+2*tau}:{WT+2*tau+1}], v[{u}:{u+1}]')
        for j in range(8):
            u = UF + 2 * j
            a.wait(tv[j])
            a(f'v_lshlrev_b32 v{VF}, 16, v{V0+j}\nv_and_b32 v{VF+1}, 0xffff0000, v{V0+j}')
            a(f'v_pk_mul_f32 v[{u}:{u+1}], v[{u}:{u+1}], v[{VF}:{VF+1}]')
        for c in range(2):
            for n in range(4):
                a(f'v_cvt_pk_bf16_f32 v{64+4*c+n}, v{UF+2*(7-2*n)+c}, v{UF+2*(6-2*n)+c}')
        a('ds_write_b128 v59, v[64:67]\nds_write_b128 v59, v[68:71] offset:144')
        a('s_waitcnt lgkmcnt(0)\ns_barrier')
        stamp(a, opt, 'kv2')

    def conv_addresses():
        def copybase(dst, c):
            a(f's_mov_b32 s26, {sum(DELTA[i] << (4*i) for i in range(8))}\nv_lshlrev_b32 v199, 2, v{c}\nv_lshrrev_b32 v199, v199, s26\nv_and_b32 v199, 15, v199')
            a(f'v_mul_u32_u24 v{dst}, 4352, v{c}\nv_lshl_add_u32 v{dst}, v199, 4, v{dst}\nv_add_u32 v{dst}, s29, v{dst}')
        a('v_and_b32 v198, 7, v0'); copybase(vC3, 198)
        a(f'v_and_b32 v{vL15}, 15, v0\nv_add_u32 v197, 1, v{vL15}\nv_and_b32 v198, 7, v197'); copybase(vA, 198)
        a(f'v_lshrrev_b32 v197, 3, v197\nv_lshrrev_b32 v{vL4}, 4, v0\nv_add_u32 v197, v197, v{vL4}\nv_lshl_add_u32 v{vA}, v197, 4, v{vA}\nv_subrev_u32 v{vA}, 32, v{vA}')
        a(f'v_lshlrev_b32 v{vB}, 4, v{vL4}\nv_lshlrev_b32 v197, 5, v{vL15}\nv_sub_u32 v{vB}, v{vB}, v197\ns_add_u32 s26, s28, 480\nv_add_u32 v{vB}, s26, v{vB}')

    def d_value():
        a('s_cmp_eq_u32 s51, 0\ns_cselect_b32 s26, 16, 0\ns_lshl_b32 s58, s58, s26\ns_and_b32 s58, s58, 0xffff0000')

    a(f'v_mul_u32_u24 v59, 288, v50\nv_lshlrev_b32 v58, 4, v51\nv_sub_u32 v59, v59, v58\nv_add_u32 v59, {L_UB + 112}, v59')
    a('s_cmp_eq_u32 s27, 0\ns_cbranch_scc0 L_hw')
    snap = a.snapshot()
    a('s_lshl_b32 s26, s24, 5\ns_add_u32 s26, s26, s25\ns_lshr_b32 s50, s26, 4\ns_and_b32 s48, s26, 15\ns_lshl_b32 s48, s48, 1\ns_add_u32 s48, s48, s51')
    a(f's_mul_i32 s59, s50, {8*3584}\ns_mul_i32 s3, s48, 112\ns_add_u32 s59, s59, s3')
    a(f's_mov_b32 s12, s44\ns_mov_b32 s13, s45\ns_mov_b32 s44, s46\ns_mov_b32 s45, s47\ns_mov_b32 s14, {448*3584}\ns_mov_b32 s46, s14\ns_mov_b32 s47, 0x20000')
    a('v_mul_u32_u24 v213, 9363, v0\nv_lshrrev_b32 v213, 16, v213\nv_mul_u32_u24 v214, 7, v213\nv_sub_u32 v214, v0, v214')
    a('v_mul_u32_u24 v222, 3584, v213\nv_lshl_add_u32 v222, v214, 4, v222\nv_cmp_gt_u32 vcc, 56, v0\nv_cndmask_b32 v222, v56, v222, vcc')
    a(f'buffer_load_dwordx4 v[240:243], v222, s[12:15], s59 offen')
    tA = a(f'buffer_load_dwordx4 v[244:247], v222, s[44:47], s59 offen')
    a('v_lshrrev_b32 v140, 3, v0\nv_and_b32 v142, 7, v0\nv_lshlrev_b32 v142, 4, v142\nv_lshl_add_u32 v141, v140, 12, v142')
    a(f'v_mul_u32_u24 v140, 144, v140\nv_add_u32 v140, v140, v142\ns_mul_i32 s26, s51, {32*144}\ns_add_u32 s26, s26, {L_UB}\nv_add_u32 v140, s26, v140')
    stamp(a, opt, 'early')
    kv_compute()
    UO = 224
    tb = [a(f'ds_read_b128 v[{UO+4*i}:{UO+4*i+3}], v140 offset:{8*144*i}') for i in range(4)]
    make_tag(a)
    def tile_out(base, mod):
        a(f's_add_u32 s26, s37, {base}')
        for i in range(4):
            a.wait(tb[i]); a(f'buffer_store_dwordx4 v[{UO+4*i}:{UO+4*i+3}], v141, s[8:11], s26 offen {mod}')
            if i < 3: a('s_add_u32 s26, s26, 0x8000')
    tile_out(UR, '')
    stamp(a, opt, 'ust')
    d_value()
    conv_addresses()
    a(f's_lshl_b32 s26, s24, 8\ns_lshl_b32 s3, s25, 3\ns_add_u32 s3, s3, s26\ns_lshl_b32 s33, s51, 2\ns_add_u32 s3, s3, s33\nv_mov_b32 v{vFW}, s3\nv_lshl_add_u32 v{vFR}, v0, 2, s26')
    a('v_mov_b32 v200, 0\nv_mov_b32 v201, 0\nv_mov_b32 v202, 0\nv_mov_b32 v203, 0')
    a(f'v_subrev_u32 v197, 32, v{vC3}\nv_bfe_u32 v198, v0, 3, 1\nv_lshl_add_u32 v197, v198, 4, v197')
    a(f's_add_u32 s26, s28, 4096\nv_add_u32 v198, s26, v{vXR}\nv_cmp_gt_u32 vcc, 32, v0\nv_cndmask_b32 v197, v197, v198, vcc')
    a('s_mov_b32 exec_lo, 0x3fffffff\ns_mov_b32 exec_hi, 0x1ff\nds_write_b128 v197, v[200:203]\ns_mov_b64 exec, -1')
    a(f's_mul_i32 s3, s51, 2048\ns_add_u32 s3, s3, {L_WA}')
    a(f'v_mul_u32_u24 v220, 240, v213\nv_lshl_add_u32 v220, v214, 5, v220\nv_add_u32 v220, s3, v220')
    a(f'v_lshrrev_b32 v213, 4, v0\nv_bfe_u32 v214, v0, 2, 2\nv_mul_u32_u24 v221, 240, v214\nv_lshl_add_u32 v221, v213, 5, v221')
    a(f'v_and_b32 v214, 3, v0\nv_lshl_add_u32 v221, v214, 3, v221\nv_add_u32 v221, s3, v221')
    a(f'v_and_b32 v214, 15, v0\nv_lshlrev_b32 v214, 4, v214\nv_lshl_add_u32 v215, v213, 10, v214\nv_add_u32 v222, 4096, v215\nv_cmp_gt_u32 vcc, 48, v0\nv_cndmask_b32 v222, v56, v222, vcc')
    a(f's_lshr_b32 s32, s48, 2\ns_lshl_b32 s32, s32, 9\ns_and_b32 s3, s48, 3\ns_lshl_b32 s3, s3, 2\ns_add_u32 s32, s32, s3\ns_lshl_b32 s3, s50, 4\ns_add_u32 s32, s32, s3\ns_add_u32 s32, s32, {F_W}\nv_mov_b32 v223, s32')
    a(f's_mul_i32 s48, s48, 150528\ns_lshr_b32 s3, s50, 2\ns_mul_i32 s3, s3, 7168\ns_add_u32 s48, s48, s3\ns_and_b32 s3, s50, 3\ns_lshl_b32 s3, s3, 8\ns_add_u32 s48, s48, s3\ns_add_u32 s48, s48, {WW}')
    a(f's_mov_b32 s33, {FU_L}\ns_waitcnt vmcnt(0)')
    flag_store(a, vFW, 's33', '')
    stamp(a, opt, 'uflag')
    a('s_mov_b32 exec_hi, 0xffffff')
    for i in range(4): a(f'ds_write2_b32 v220, v{240+i}, v{244+i} offset0:{2*i} offset1:{2*i+1}')
    a('s_mov_b64 exec, -1')
    for i in range(2):
        a(f'ds_read_b64_tr_b16 v[{248+4*i}:{249+4*i}], v221 offset:{128*i}\nds_read_b64_tr_b16 v[{250+4*i}:{251+4*i}], v221 offset:{128*i + 960}')
    ffn_addresses1(a)
    L = 'L_pu'
    a(f's_mov_b32 s34, 0\ns_mov_b32 s35, {UR}\ns_lshl_b32 s18, s24, 15\ns_add_u32 s18, s18, {UR}')
    a(f'{L}:')
    a(f's_mov_b32 s33, {FU_L}\nbuffer_load_dword v78, v{vFR}, s[8:11], s33 offen sc1')
    a('s_waitcnt vmcnt(0)')
    a(f'v_cmp_ne_u32 vcc, s23, v78\ns_cbranch_vccz {L}_x')
    a(f's_add_u32 s34, s34, 1\ns_cmp_lt_u32 s34, 24\ns_cbranch_scc1 {L}')
    a(f's_cmp_eq_u32 s34, 24\ns_cbranch_scc0 {L}_n')
    tile_out(URG, 'sc1')
    a(f's_mov_b32 s33, {FU_G}\ns_waitcnt vmcnt(0)')
    flag_store(a, vFW, 's33', 'sc1')
    a(f'{L}_n:')
    a(f's_cmp_gt_u32 s34, {SPIN}\ns_cbranch_scc1 {L}_x')
    a(f's_mov_b32 s33, {FU_G}\nbuffer_load_dword v78, v{vFR}, s[8:11], s33 offen sc1')
    a('s_waitcnt vmcnt(0)\nv_and_b32 v79, -16, v78')
    a(f'v_cmp_ne_u32 vcc, s42, v79\ns_cbranch_vccnz {L}')
    a(f's_mov_b32 s35, {URG}\nv_cmp_ne_u32 vcc, s23, v78\ns_cbranch_vccz {L}_x\ns_mov_b32 s18, {XNL}')
    a(f'{L}_x:')
    a('s_waitcnt vmcnt(0)')
    stamp(a, opt, 'upoll')
    a('s_add_u32 s3, s30, s35\ns_mov_b32 s26, s28')
    for i in range(4):
        a('s_mov_b32 m0, s26\ns_add_u32 s26, s26, 1024')
        tud = a(f'buffer_load_dwordx4 v{vXR}, s[8:11], s3 offen sc1 lds\ns_add_u32 s3, s3, 1024')
    a(f'v_mov_b32 v78, s18\nv_mov_b32 v79, {L_LOC}\nds_write_b32 v79, v78')
    a.wait(tud)
    stamp(a, opt, 'hcp')
    a('s_waitcnt lgkmcnt(0)\ns_barrier')
    a('buffer_store_dwordx4 v[248:251], v215, s[8:11], s48 offen sc1')
    tAs = a('buffer_store_dwordx4 v[252:255], v222, s[8:11], s48 offen sc1')
    q_and_touch(a, False)
    stamp(a, opt, 'cstart')
    def hookU(it):
        if it == opt.get('aflag', 5):
            a.wait(tAs); flag_store(a, 223, '0', 'sc1')
    conv_phase(a, opt, 0, hookU)
    a(f'v_mov_b32 v223, {OOB}')
    a('s_waitcnt vmcnt(4)')
    stamp(a, opt, 'wst')
    stamp(a, opt, 'yst')
    a('s_branch L_join')
    a('L_hw:'); a.restore(snap)
    code_prefetch(a)
    a(f's_mov_b32 s4, s34\ns_mov_b32 s5, s35\ns_mov_b32 s6, {448*4096}')
    a(f'v_add_u32 v140, s30, v{vXR}\nv_subrev_u32 v141, 16, v140\nv_cmp_eq_u32 vcc, 0, v0\nv_cndmask_b32 v142, v141, v56, vcc')
    HL = 144
    th = []
    a(f's_add_u32 s26, s37, {UR}\nv_and_b32 v143, 31, v0\nv_lshlrev_b32 v143, 12, v143\nbuffer_load_dword v{vD1}, v143, s[8:11], s26 offen sc1')
    for st in range(4):
        a(f'buffer_load_dwordx4 v[{HL+8*st}:{HL+8*st+3}], v{142 if st == 0 else 141}, s[4:7], 0 offen offset:{1024*st} {NT}')
        th.append(a(f'buffer_load_dwordx4 v[{HL+8*st+4}:{HL+8*st+7}], v140, s[4:7], 0 offen offset:{1024*st} {NT}'))
    flag_touch(a)
    conv_addresses()
    stamp(a, opt, 'early')
    kv_compute()
    make_tag(a)
    d_value()
    a(f'v_add_u32 v140, s29, v{vXR}')
    for st in range(4):
        d = HL + 8 * st; e = 88; o = 96
        a.wait(th[st])
        cb = lambda c: c * 4352 + 16 * DELTA[c] + 1024 * st - (16 if c else 0)
        a(f'ds_write_b128 v140, v[{d+4}:{d+7}] offset:{cb(0)}')
        for i in range(1, 4): a(f'v_mov_b32 v{o+i-1}, v{d+i}')
        a(f'ds_write_b128 v140, v[{d+2}:{d+5}] offset:{cb(4)}')
        for i in range(4, 7): a(f'v_mov_b32 v{o+i-1}, v{d+i}')
        a(f'ds_write_b128 v140, v[{o}:{o+3}] offset:{cb(2)}')
        for i in range(3): a(f'v_alignbit_b32 v{e+i}, v{d+i+1}, v{d+i}, 16')
        a(f'ds_write_b128 v140, v[{o+2}:{o+5}] offset:{cb(6)}')
        for i in range(3, 6): a(f'v_alignbit_b32 v{e+i}, v{d+i+1}, v{d+i}, 16')
        a(f'ds_write_b128 v140, v[{e}:{e+3}] offset:{cb(1)}')
        for i in range(1, 4): a(f'v_alignbit_b32 v{o+8+i-1}, v{d+i+1}, v{d+i}, 16')
        a(f'ds_write_b128 v140, v[{e+2}:{e+5}] offset:{cb(5)}')
        for i in range(4, 7): a(f'v_alignbit_b32 v{o+8+i-1}, v{d+i+1}, v{d+i}, 16')
        a(f'ds_write_b128 v140, v[{o+8}:{o+11}] offset:{cb(3)}')
        a(f'ds_write_b128 v140, v[{o+10}:{o+13}] offset:{cb(7)}')
    stamp(a, opt, 'ust')
    a('s_waitcnt lgkmcnt(0)')
    stamp(a, opt, 'uflag'); stamp(a, opt, 'upoll'); stamp(a, opt, 'hcp')
    a('s_barrier')
    stamp(a, opt, 'cstart')
    WP = opt.get('wproc', 8)
    box = {}
    def hook(it):
        if it == 0:
            a('s_lshl_b32 s26, s24, 5\ns_add_u32 s26, s26, s25\ns_add_u32 s26, s26, 56')
            box['W'] = WTask(a, NT, f's_mul_i32 s3, s51, {8*W1P}\ns_add_u32 s3, s3, {L_WS}')
            box['W'].loads()
        if it == 1:
            ffn_addresses1(a)
            box['q'] = q_and_touch(a, False)
            a(f'v_mov_b32 v204, {L_LOC}')
            box['l'] = a('ds_read_b32 v204, v204')
        if it == 2:
            a.wait(box['l'])
            a('v_readfirstlane_b32 s18, v204')
        if it == WP: box['W'].stage()
        if it == WP + 1: box['W'].transpose()
        if it == WP + 2: box['W'].store()
    conv_phase(a, opt, 1, hook)
    for it in range(8, WP + 3): hook(it)
    a.wait(box['q'][-1])
    stamp(a, opt, 'wst')
    stamp(a, opt, 'yst')
    a('s_branch L_join')
    a('L_spare:')
    a.reset_counters()
    a('s_waitcnt lgkmcnt(0)')
    a('s_load_dword s43, s[8:9], 0x0')
    a(f's_mov_b32 s4, s52\ns_mov_b32 s5, s53\ns_mov_b32 s6, {1792*896}')
    a('v_lshrrev_b32 v72, 4, v0\nv_lshlrev_b32 v72, 1, v72\nv_bfe_u32 v73, v0, 2, 1\nv_add_u32 v72, v72, v73\nv_bfe_u32 v73, v0, 3, 1\nv_lshl_add_u32 v72, v73, 3, v72')
    a('v_mul_u32_u24 v72, 896, v72\nv_and_b32 v73, 3, v0\nv_lshl_add_u32 v72, v73, 4, v72')
    for rep in range(2):
        a(f's_add_u32 s26, s25, {32*rep}\ns_and_b32 s{38+12*rep}, s26, 7\ns_lshr_b32 s{39+12*rep}, s26, 3')
        k2 = f's{39+12*rep}'; sl = f's{38+12*rep}'
        a(f's_mul_i32 s28, {k2}, 7\ns_add_u32 s28, s28, s22')
        a(f's_sub_u32 s29, {k2}, 4\ns_lshl_b32 s29, s29, 1\ns_lshr_b32 s30, s22, 1\ns_add_u32 s29, s29, s30\ns_mul_i32 s29, s29, 7')
        a('s_and_b32 s30, s22, 1\ns_add_u32 s29, s29, s30\ns_add_u32 s29, s29, 4')
        a(f's_cmp_lt_u32 {k2}, 4\ns_cselect_b32 s28, s28, s29')
        a(f's_mul_i32 s29, s22, 7\ns_add_u32 s29, s29, 6\ns_cmp_ge_u32 {k2}, 6\ns_cselect_b32 s28, s29, s28')
        a(f's_mul_i32 s29, {sl}, 28\ns_add_u32 s28, s28, s29\ns_mul_i32 s28, s28, 7168')
        a(f's_mul_i32 s29, s22, 7168\ns_add_u32 s29, s29, {28672*rep}')
        for i in range(7):
            a('s_mov_b32 m0, s29\ns_add_u32 s29, s29, 1024')
            tdm = a(f'buffer_load_dwordx4 v{vXR}, s[4:7], s28 offen {NT} lds\ns_add_u32 s28, s28, 1024')
    ffn_addresses1(a, True)
    flag_touch(a)
    q_and_touch(a, True)
    a(f's_mov_b32 s18, {XNL}')
    a.wait(tdm)
    a('s_waitcnt lgkmcnt(0)\ns_barrier')
    make_tag(a)
    for rep in range(2):
        k2 = f's{39+12*rep}'; sl = f's{38+12*rep}'
        a(f's_xor_b32 s35, {k2}, s22\ns_cmp_lt_u32 {k2}, 4\ns_cselect_b32 s35, s35, {k2}')
        a(f's_lshl_b32 s28, {sl}, 2\ns_add_u32 s28, s28, s22\ns_mul_i32 s28, s28, 150528\ns_add_u32 s28, s28, {WW + 98*1024}')
        a(f's_cmp_ge_u32 {k2}, 7\ns_cselect_b32 s28, {OOB}, s28\ns_mul_i32 s29, s22, 7')
        tr = []
        for j in range(7):
            a(f's_add_u32 s26, s29, {j}\ns_lshr_b32 s3, s26, 1\ns_lshl_b32 s3, s3, 6\ns_and_b32 s26, s26, 1\ns_lshl_b32 s26, s26, 3\ns_add_u32 s26, s26, s3\ns_add_u32 s26, s26, {28672*rep}')
            a(f'v_add_u32 v73, s26, v72')
            o = 80 + 28 * rep + 4 * j
            a(f'ds_read_b64_tr_b16 v[{o}:{o+1}], v73')
            tr.append(a(f'ds_read_b64_tr_b16 v[{o+2}:{o+3}], v73 offset:14336'))
        for j in range(7):
            g = [g for g in GROUPS if j in g][0]
            o = 80 + 28 * rep + 4 * j
            a(f's_mul_i32 s26, s35, {1024*len(g)}\ns_add_u32 s26, s26, s28\ns_add_u32 s26, s26, {1024*g2pos(j, 0)}')
            a.wait(tr[j])
            a(f'buffer_store_dwordx4 v[{o}:{o+3}], v{vXR}, s[8:11], s26 offen sc1')
    a(f'v_mov_b32 v223, {OOB}')
    for rep in range(2):
        k2 = f's{39+12*rep}'; sl = f's{38+12*rep}'
        a(f's_lshl_b32 s26, {sl}, 9\ns_lshl_b32 s3, {k2}, 4\ns_add_u32 s26, s26, s3\ns_lshl_b32 s3, s22, 2\ns_add_u32 s26, s26, s3\ns_add_u32 s26, s26, {F_W + 4*98}')
        a(f's_cmp_ge_u32 {k2}, 7\ns_cselect_b32 s26, {OOB}, s26\nv_writelane_b32 v223, s26, {rep}')
    a('s_waitcnt vmcnt(14)')
    if opt.get('stamps'):
        for n in list(STN[1:]): stamp(a, opt, n)
    a('L_join:')
    a.vm_done = a.vm_issued
    a(f's_lshl_b32 s26, s21, 9\ns_add_u32 s26, s26, {F_W}\ns_lshl_b32 s3, s22, 2\ns_add_u32 s3, s3, s26\nv_min_u32 v220, 11, v0\nv_lshl_add_u32 v220, v220, 4, s3')
    twa = a('buffer_load_dword v222, v220, s[8:11], 0 offen sc1')
    a('v_min_u32 v221, 41, v0\nv_lshl_add_u32 v221, v221, 2, s26\nv_add_u32 v221, 224, v221\ns_add_u32 s3, s3, 192\nv_writelane_b32 v221, s3, 62\ns_add_u32 s3, s3, 16\nv_writelane_b32 v221, s3, 63')
    for e in range(2):
        for i in range(4):
            a(f'v_lshlrev_b32 v{X+8*e+2*i}, 16, v{YP+4*e+i}\nv_and_b32 v{X+8*e+2*i+1}, 0xffff0000, v{YP+4*e+i}')
    stats(a, 0)
    norm_to(a, Z)
    stamp(a, opt, 'lnq')
    a(f's_mov_b32 s52, s54\ns_mov_b32 s53, s55\ns_mov_b32 s54, {XBYTES}\ns_mov_b32 s55, 0x20000')
    a(f's_lshl_b32 s26, s21, 4\ns_lshl_b32 s3, s22, 2\ns_add_u32 s26, s26, s3\ns_lshl_b32 s3, s20, 8\ns_add_u32 s26, s26, s3\nv_mov_b32 v{vFW}, s26\nv_lshl_add_u32 v{vFR}, v0, 2, s3')
    S = Stream(a)
    def settle(tok, vres, vaddr, name):
        a.wait(tok)
        a(f'v_and_b32 v{vres}, -16, v{vres}\nv_cmp_ne_u32 vcc, s42, v{vres}\ns_cbranch_vccz L_{name}_ok')
        sn = a.snapshot()
        poll_masked(a, vaddr, '0', name)
        a.restore(sn)
        a(f'L_{name}_ok:')
    YL = T0 + 32
    def yloads():
        for i in range(8):
            a(f's_mov_b32 s33, {YT + 8192*i}')
            t = a(f'buffer_load_dwordx2 v[{YL+2*i}:{YL+2*i+1}], v{vY}, s[8:11], s33 offen sc1')
        return t
    def ycheck(target, taken):
        a(f'v_xor_b32 v{vPL}, s42, v{YL+1}\nv_xor_b32 v{vD0}, s42, v{YL+3}')
        for i in range(2, 8):
            r = vPL if i % 2 == 0 else vD0
            a(f'v_bitop3_b32 v{r}, v{YL+2*i+1}, s42, v{r} bitop3:0xbe')
        a(f'v_or_b32 v{vPL}, v{vPL}, v{vD0}\nv_cmp_ne_u32 vcc, 0, v{vPL}\ns_and_b64 vcc, vcc, s[16:17]\ns_cbranch_scc{taken} {target}')
    ty = yloads()
    ffn_addresses2(a)
    settle(twa, 222, 220, 'wa')
    stamp(a, opt, 'wpa')
    S.prefetch(opt.get('nA', 6))
    ffn_addresses3(a)
    a.wait(ty)
    ycheck('L_py_x', 0)
    sn = a.snapshot()
    a('s_mov_b32 s34, 0\nL_py:')
    yloads()
    a(f's_add_u32 s34, s34, 1\ns_cmp_gt_u32 s34, {SPIN}\ns_cbranch_scc1 L_py_t\ns_waitcnt vmcnt(0)')
    ycheck('L_py', 1)
    a('L_py_t:\ns_waitcnt vmcnt(0)')
    a.restore(sn)
    a('L_py_x:')
    for i in range(8): a(f'v_mov_b32 v{YP+i}, v{YL+2*i}')
    a(f's_mov_b64 exec, 3\nbuffer_store_dword v{vTAG}, v223, s[8:11], 0 offen sc1\ns_mov_b64 exec, -1')
    stamp(a, opt, 'y')
    S.win = None
    S.prefetch(opt.get('nB', 8))
    unpack_y(a)
    gate_and_norm(a, 1, lambda e: a(f's_add_u32 s33, s18, {14336*e}\nbuffer_store_dwordx4 v[{XO+4*e}:{XO+4*e+3}], v{vXS}, s[8:11], s33 offen'))
    a(f's_mov_b32 s33, {F_X0}\ns_waitcnt vmcnt(0)')
    flag_store(a, vFW, 's33', '')
    stamp(a, opt, 'E0')
    S.prefetch(opt.get('nC', 4))
    L = 'L_px'
    a(f's_mov_b32 s34, 0\ns_mov_b32 s35, s18\ns_mov_b32 s37, 0')
    a(f'{L}:')
    a(f's_mov_b32 s33, {F_X0}\nbuffer_load_dword v{vPL}, v{vFR}, s[8:11], s33 offen sc1')
    a('s_waitcnt vmcnt(0)')
    a(f'v_cmp_eq_u32 vcc, s23, v{vPL}\nv_and_b32 v{vPL}, -16, v{vPL}\nv_cmp_eq_u32 s[28:29], s42, v{vPL}\ns_cmp_eq_u32 vcc_lo, -1\ns_cbranch_scc1 {L}_x')
    a(f's_add_u32 s34, s34, 1\ns_cmp_eq_u32 s34, 24\ns_cbranch_scc0 {L}_n')
    for e in range(2):
        a(f's_mov_b32 s33, {XNG1 + 14336*e}\nbuffer_store_dwordx4 v[{XO+4*e}:{XO+4*e+3}], v{vXS}, s[8:11], s33 offen sc1')
    a(f's_mov_b32 s33, {F_X0}\ns_waitcnt vmcnt(0)')
    flag_store(a, vFW, 's33', 'sc1', off=128)
    a(f'{L}_n:')
    a(f's_cmp_gt_u32 s34, {SPIN}\ns_cbranch_scc1 {L}_x')
    a(f's_cmp_eq_u32 s29, -1\ns_cbranch_scc0 {L}')
    a(f's_mov_b32 s35, {XNG1}\ns_cmp_eq_u32 vcc_hi, -1\ns_cselect_b32 s37, 0, 1')
    a(f'{L}_x:')
    a.vm_done = a.vm_issued - 1
    stamp(a, opt, 'px0')
    G0 = opt.get('g0', 4)
    S.win = None
    tw_ = a(f'buffer_load_dword v222, v221, s[8:11], 0 offen sc1')
    a(f's_lshl_b32 s59, s21, 9\ns_add_u32 s59, s59, {F_W + 4*98}')
    tg = gather_xn(a)
    S.prefetch(20 - opt.get('nA', 6) - opt.get('nB', 8) - opt.get('nC', 4))
    assert max(p for (_, p) in S.tok) < 21
    a(f's_lshl_b32 s26, s20, 7\nv_subrev_u32 v{vFW}, s26, v{vFW}\nv_and_b32 v{vFR}, 31, v0\nv_lshl_add_u32 v{vFR}, v{vFR}, 2, s26')
    a.wait(tg[G0 - 1])
    settle(tw_, 222, 221, 'wb')
    a('v_min_u32 v221, 27, v0\nv_lshl_add_u32 v221, v221, 2, s59')
    stamp(a, opt, 'wpoll')
    a('s_barrier')
    stamp(a, opt, 'gath0')
    a('s_cmp_eq_u32 s37, 0\ns_cbranch_scc0 L_global')
    snap = a.snapshot(); sst = S.state(); tg0 = tg
    for mode in 'LG':
        if mode == 'G':
            a('L_end:\ns_endpgm\nL_code_end:\nL_global:'); a.restore(snap); S.set_state(sst)
        loc = mode == 'L'
        fm = '' if loc else 'sc1'
        tg = tg0
        for layer in range(2):
            pbase = PB1 if (loc or layer == 0) else PB2
            pmod = opt.get(f'p{layer}mod', '' if layer == 0 else 'nt').replace('_', ' ').replace('plain', '') if loc else 'sc1'
            touch = opt.get(f'touch{layer}', 'none' if layer == 0 else 'sc1').replace('_', ' ').replace('plain', '') if loc else 'none'
            ffn(a, S, opt, layer, tg, pbase, pmod, None if touch == 'none' else touch, settle, mode)
            a(f's_mov_b32 s33, {F_P + 4096*layer}\ns_waitcnt vmcnt(0)')
            stamp(a, opt, f'drain{layer}')
            flag_store(a, vFW, 's33', fm)
            if layer == 0: unpack_y(a)
            poll_masked(a, vFR, 's33', 'pp')
            stamp(a, opt, f'pp{layer}')
            toks = []
            for sidx in range(8):
                a(f's_mov_b32 s33, {pbase + 7168*sidx}')
                for e in range(2):
                    r = T0 + 8 * sidx + 4 * e
                    toks.append(a(f'buffer_load_dwordx4 v[{r}:{r+3}], v{vPR}, s[8:11], s33 offen offset:{256*e} {opt.get(f"pld{layer}", "nt" if layer == 0 else "sc1").replace("_", " ") if loc else "sc1"}'))
            for sidx in range(8):
                for e in range(2):
                    r = T0 + 8 * sidx + 4 * e
                    a.wait(toks[2 * sidx + e])
                    for i in range(4):
                        x = X + 8 * (i >> 1) + 4 * e + 2 * (i & 1)
                        a(f'v_dot2_f32_bf16 v{x}, v{r+i}, s40, v{x}\nv_dot2_f32_bf16 v{x+1}, v{r+i}, s41, v{x+1}')
            if layer == 1: break
            stamp(a, opt, 'red0')
            if opt.get('ringg2', 1) == 2:
                S.win = None
                for p in STR[:NR]: S.issue(1, p)
            stats(a, 2)
            norm_to(a, Z)
            xn2 = 's18' if loc else XNG2
            a(f's_mov_b32 s35, {xn2}')
            gate_and_norm(a, 3, lambda e: a(f's_add_u32 s33, s35, {14336*e}\nbuffer_store_dwordx4 v[{XO+4*e}:{XO+4*e+3}], v{vXS}, s[8:11], s33 offen {fm}'))
            a(f's_mov_b32 s33, {F_X1}\ns_waitcnt vmcnt(0)')
            flag_store(a, vFW, 's33', fm)
            stamp(a, opt, 'E1')
            poll_masked(a, vFR, 's33', 'px')
            stamp(a, opt, 'px1')
            tg = gather_xn(a)
            S.win = None
            for p in STR[:NR]:
                if (1, p) not in S.tok: S.issue(1, p)
            a.wait(tg[G0 - 1])
            a('s_barrier')
            stamp(a, opt, 'gath1')
        for e in range(2):
            for p in range(4):
                a(f'v_cvt_pk_bf16_f32 v{XO+4*e+p}, v{X+8*e+2*p}, v{X+8*e+2*p+1}')
            a(f'buffer_store_dwordx4 v[{XO+4*e}:{XO+4*e+3}], v{vQ}, s[52:55], 0 offen offset:{896*e} {opt.get("omod", "")}')
        a(f's_add_u32 s43, s43, 1\nv_mov_b32 v{vD0}, s43\ns_cmp_eq_u32 s2, 0\ns_cselect_b32 s26, 0, {OOB}\ns_mov_b64 exec, 1')
        a(f'buffer_store_dword v{vD0}, off, s[8:11], s26\ns_mov_b64 exec, -1')
        stamp(a, opt, 'end')
        dump_stamps(a, opt)
    a('s_endpgm')


def build(opt):
    a = Asm()
    gen(a, opt)
    s = HDR + f'; @launch grid=(256,1,1) block=(256,1,1) lds={LDS_BYTES}\n'
    if opt.get('stamps'): s += '; STAMPS k:' + ','.join(STN) + '\n'
    s += '.amdgcn_target "amdgcn-amd-amdhsa--gfx950"\n' + a.finalize()
    s += kernel_desc(NAME + '_kernel', 512, 102, accum=256)
    return s


if __name__ == '__main__':
    opt = {}
    for x in sys.argv[2:]:
        k, v = x.split('=')
        opt[k] = int(v) if v.lstrip('-').isdigit() else v
    open(sys.argv[1], 'w').write(build(opt))
```
